```python
import torch

def _softmax(x, axis=-1):
    return torch.softmax(x, dim=axis)
def _gelu(x):
    return torch.nn.functional.gelu(x, approximate="tanh")
def _silu(x):
    return torch.nn.functional.silu(x)
def _sigmoid(x):
    return torch.sigmoid(x)
def _layernorm(x, axis=-1, eps=1e-5):
    m = x.mean(dim=axis, keepdim=True)
    v = x.var(dim=axis, keepdim=True, unbiased=False)
    return (x - m) / torch.sqrt(v + eps)
def _scatter_add(tgt, idx, src, axis=0):
    return tgt.clone().index_add_(axis, idx, src)
def _segment_sum(src, seg, n):
    out = torch.zeros((n,) + src.shape[1:], dtype=src.dtype)
    return out.index_add_(0, seg, src)
def _pad(x, pw):
    flat = tuple(v for pair in reversed(pw) for v in pair)
    return torch.nn.functional.pad(x, flat)

kernel_name = 'parallel_sum__spectral_fnet__dense_activation_squared_relu__prompt'

def setup_inputs():

    _w = (lambda a: (lambda t: t.to(torch.bfloat16) if t.is_floating_point() else t)(torch.as_tensor(a)))
    def _A_setup():
        B, S, D = 1, 2048, 512
        ns = torch.arange(S)[:, None] * torch.arange(S)[None, :]
        nd = torch.arange(D)[:, None] * torch.arange(D)[None, :]
        Ws_re = torch.cos(-2.0 * torch.pi * ns / S).to(float)
        Ws_im = torch.sin(-2.0 * torch.pi * ns / S).to(float)
        Wd_re = torch.cos(-2.0 * torch.pi * nd / D).to(float)
        Wd_im = torch.sin(-2.0 * torch.pi * nd / D).to(float)
        return {
            "x": _w((lambda *s: torch.randn(*s, dtype=torch.bfloat16) * 0.05)(B, S, D)),
            "dft_seq_re": _w(Ws_re),
            "dft_seq_im": _w(Ws_im),
            "dft_hid_re": _w(Wd_re),
            "dft_hid_im": _w(Wd_im),
        }
    _A_in = _A_setup()

    def _B_setup():
        B, S, D, F = 1, 2048, 512, 1792
        return {
            "x": _w((lambda *s: torch.randn(*s, dtype=torch.bfloat16) * 0.05)(B, S, D)),
            "w1": _w((lambda *s: torch.randn(*s, dtype=torch.bfloat16) * 0.2)(D, F)),
            "b1": _w((lambda *s: torch.randn(*s, dtype=torch.bfloat16) * 0.2)(F)),
            "w2": _w((lambda *s: torch.randn(*s, dtype=torch.bfloat16) * 0.2)(F, D)),
            "b2": _w((lambda *s: torch.randn(*s, dtype=torch.bfloat16) * 0.2)(D)),
        }
    _B_in = _B_setup()

    return {
        "A_x": _A_in["x"],
        "A_dft_seq_re": _A_in["dft_seq_re"],
        "A_dft_seq_im": _A_in["dft_seq_im"],
        "A_dft_hid_re": _A_in["dft_hid_re"],
        "A_dft_hid_im": _A_in["dft_hid_im"],
        "B_x": _B_in["x"],
        "B_w1": _B_in["w1"],
        "B_b1": _B_in["b1"],
        "B_w2": _B_in["w2"],
        "B_b2": _B_in["b2"],
    }

def reference(A_x, A_dft_seq_re, A_dft_seq_im, A_dft_hid_re, A_dft_hid_im, B_x, B_w1, B_b1, B_w2, B_b2):
    def _A_ref(x, dft_seq_re, dft_seq_im, dft_hid_re, dft_hid_im):
        a = torch.einsum("bsd,ed->bse", x, dft_hid_re)
        b = torch.einsum("bsd,ed->bse", x, dft_hid_im)
        y = torch.einsum("ts,bse->bte", dft_seq_re, a) - torch.einsum("ts,bse->bte", dft_seq_im, b)
        return y

    def _B_ref(x, w1, b1, w2, b2):
        h = torch.einsum("bsd,df->bsf", x, w1) + b1
        zero = torch.zeros_like(h)
        r = torch.where(h > zero, h, zero)
        h = r * r
        out = torch.einsum("bsf,fd->bsd", h, w2) + b2
        return out

    x = A_x
    xn = _layernorm(x, axis=-1)
    return x + _A_ref(xn, A_dft_seq_re, A_dft_seq_im, A_dft_hid_re, A_dft_hid_im) + _B_ref(xn, B_w1, B_b1, B_w2, B_b2)
```

```python
import sys

KN = "parallel_sum__spectral_fnet__dense_activation_squared_relu__prompt"
KA_X, KA_CR, KA_CI, KA_DR, KA_DI, KA_BX, KA_W1, KA_B1, KA_W2, KA_B2, KA_OUT, KA_DBG, KA_WS = [8*i for i in range(13)]
WS_XN = 0
WS_BT = 2 << 20
BT_STRIDE = 5888 * 2
WS_H = 8 << 20
WS_P = 16 << 20
NSPLIT = 4

class Asm:
    def __init__(s):
        s.l = []
    def __call__(s, t):
        s.l.append("    " + t)
    def lab(s, t):
        s.l.append(t + ":")
    def raw(s, t):
        s.l.append(t)
    def text(s):
        return "\n".join(s.l) + "\n"

def srd(a, d, lo, hi, nbytes):
    a(f"s_mov_b32 s{d}, s{lo}")
    a(f"s_and_b32 s{d+1}, s{hi}, 0xffff")
    a(f"s_mov_b32 s{d+2}, {nbytes}")
    a(f"s_mov_b32 s{d+3}, 0x00020000")

def add64(a, lo, hi, imm):
    a(f"s_add_u32 s{lo}, s{lo}, {imm}")
    a(f"s_addc_u32 s{hi}, s{hi}, 0")

def kernel_header(a, name):
    a.raw(f".globl {name}")
    a.raw(".p2align 8")
    a.raw(f".type {name},@function")
    a.lab(name)

def kernel_desc(name, vgpr, sgpr=102, accum=None):
    if accum is None:
        accum = (vgpr + 3) // 4 * 4
    return f""".p2align 6
.amdhsa_kernel {name}
  .amdhsa_next_free_vgpr {vgpr}
  .amdhsa_next_free_sgpr {sgpr}
  .amdhsa_accum_offset {accum}
  .amdhsa_group_segment_fixed_size 0
  .amdhsa_kernarg_size 104
  .amdhsa_user_sgpr_count 2
  .amdhsa_user_sgpr_kernarg_segment_ptr 1
  .amdhsa_system_sgpr_workgroup_id_x 1
.end_amdhsa_kernel
"""

def wave_sum(a, v, t, vp32):
    for x in (1, 2, 4, 8, 16):
        a(f"ds_swizzle_b32 v{t}, v{v} offset:{(x << 10) | 0x1f}")
        a("s_waitcnt lgkmcnt(0)")
        a(f"v_add_f32 v{v}, v{v}, v{t}")
    a(f"ds_bpermute_b32 v{t}, v{vp32}, v{v}")
    a("s_waitcnt lgkmcnt(0)")
    a(f"v_add_f32 v{v}, v{v}, v{t}")

def round_bf16(a, d, s):
    a(f"v_cvt_pk_bf16_f32 v{d}, v{s}, v{s}")
    a(f"v_lshlrev_b32 v{d}, 16, v{d}")

def gen_ln(a, name):
    kernel_header(a, name)
    a("s_cmp_ge_u32 s2, 512")
    a("s_cbranch_scc1 L_ln_done")
    a(f"s_load_dwordx2 s[4:5], s[0:1], {KA_X}")
    a(f"s_load_dwordx2 s[6:7], s[0:1], {KA_WS}")
    a("v_and_b32 v1, 63, v0")
    a("v_lshrrev_b32 v2, 6, v0")
    a("s_lshl_b32 s3, s2, 2")
    a("v_add_u32 v2, s3, v2")
    a("v_lshlrev_b32 v2, 10, v2")
    a("v_lshl_add_u32 v2, v1, 4, v2")
    a("v_xor_b32 v3, 32, v1")
    a("v_lshlrev_b32 v3, 2, v3")
    a("s_waitcnt lgkmcnt(0)")
    srd(a, 8, 4, 5, 2048*512*2)
    add64(a, 6, 7, WS_XN)
    srd(a, 12, 6, 7, 2048*512*2)
    a("buffer_load_dwordx4 v[4:7], v2, s[8:11], 0 offen")
    a("s_waitcnt vmcnt(0)")
    for i in range(4):
        a(f"v_lshlrev_b32 v{10+2*i}, 16, v{4+i}")
        a(f"v_and_b32 v{11+2*i}, 0xffff0000, v{4+i}")
    a("v_add_f32 v20, v10, v11")
    for i in range(2, 8):
        a(f"v_add_f32 v20, v20, v{10+i}")
    wave_sum(a, 20, 21, 3)
    a("v_mul_f32 v20, 0x3b000000, v20")
    a("v_mov_b32 v22, 0")
    for i in range(8):
        a(f"v_sub_f32 v23, v{10+i}, v20")
        a("v_fmac_f32 v22, v23, v23")
    wave_sum(a, 22, 21, 3)
    a("v_mul_f32 v22, 0x3b000000, v22")
    round_bf16(a, 20, 20)
    round_bf16(a, 22, 22)
    a("v_add_f32 v22, 0x3727c5ac, v22")
    round_bf16(a, 22, 22)
    a("v_sqrt_f32 v22, v22")
    a("s_nop 0")
    round_bf16(a, 22, 22)
    a("v_rcp_f32 v22, v22")
    a("s_nop 0")
    for i in range(8):
        a(f"v_sub_f32 v{10+i}, v{10+i}, v20")
    for i in range(4):
        a(f"v_cvt_pk_bf16_f32 v{4+i}, v{10+2*i}, v{11+2*i}")
    for i in range(4):
        a(f"v_lshlrev_b32 v{10+2*i}, 16, v{4+i}")
        a(f"v_and_b32 v{11+2*i}, 0xffff0000, v{4+i}")
    for i in range(8):
        a(f"v_mul_f32 v{10+i}, v{10+i}, v22")
    for i in range(4):
        a(f"v_cvt_pk_bf16_f32 v{4+i}, v{10+2*i}, v{11+2*i}")
    a("buffer_store_dwordx4 v[4:7], v2, s[12:15], 0 offen")
    a.lab("L_ln_done")
    a("s_endpgm")
    return kernel_desc(name, 32, 32)

class GemmCfg:
    def __init__(s, pfx, BM, BN, NST, btn=False, a_stride=1024, b_stride=1024, swap=False, segA=False):
        s.pfx = pfx; s.BM = BM; s.BN = BN; s.NST = NST; s.btn = btn
        s.a_stride = a_stride; s.b_stride = b_stride; s.swap = swap; s.segA = segA
        s.WM = 2; s.WN = 2; s.NW = 4
        s.FM = BM // s.WM // 16; s.FN = BN // s.WN // 16
        s.A_bytes = BM * 128
        s.RB = BN * 2
        s.B_bytes = 64 * s.RB if btn else BN * 128
        s.stage = s.A_bytes + s.B_bytes
        s.GA = BM // 8 // s.NW
        s.GB = s.B_bytes // 1024 // s.NW
        assert s.B_bytes % (1024 * s.NW) == 0
        s.L = s.GA + s.GB
        p = 4
        s.vAoff = p; p += s.GA
        s.vBoff = p; p += s.GB
        s.vRd = p; p += 4 * NST
        p = (p + 3) // 4 * 4
        s.vFA = p; p += 2 * s.FM * 4
        s.vFB = p; p += 2 * s.FN * 4
        s.vAcc = p; p += s.FM * s.FN * 4
        s.vTmp = p; p += 24
        s.nvgpr = p
        assert p <= 256, p
    def lds(s):
        return s.stage * s.NST

def gemm_setup(a, c, sArow, sBrow):
    T = c.vTmp
    a("v_and_b32 v1, 63, v0")
    a("v_lshrrev_b32 v2, 6, v0")
    a("s_nop 0")
    a("v_readfirstlane_b32 s16, v2")
    a("v_lshrrev_b32 v2, 3, v1")
    a("v_and_b32 v3, 7, v1")
    a("v_xor_b32 v3, v3, v2")
    a("v_lshlrev_b32 v3, 4, v3")
    a(f"s_mul_i32 s24, s16, {c.GA*8}")
    a(f"s_add_u32 s24, s24, s{sArow}")
    a(f"v_add_u32 v{T}, s24, v2")
    a(f"s_mov_b32 s25, {c.a_stride}")
    a(f"v_mul_lo_u32 v{T}, v{T}, s25")
    a(f"v_add_u32 v{T}, v{T}, v3")
    for i in range(c.GA):
        a(f"v_add_u32 v{c.vAoff+i}, {i*8*c.a_stride - (i % 4)*1024}, v{T}")
    if not c.btn:
        a(f"s_mul_i32 s24, s16, {c.GB*8}")
        a(f"s_add_u32 s24, s24, s{sBrow}")
        a(f"v_add_u32 v{T}, s24, v2")
        a(f"s_mov_b32 s25, {c.b_stride}")
        a(f"v_mul_lo_u32 v{T}, v{T}, s25")
        a(f"v_add_u32 v{T}, v{T}, v3")
        for i in range(c.GB):
            a(f"v_add_u32 v{c.vBoff+i}, {i*8*c.b_stride - (i % 4)*1024}, v{T}")
    else:
        assert c.RB == 448
        a(f"s_mul_i32 s24, s16, {c.GB*64}")
        a(f"s_lshl_b32 s25, s{sBrow}, 1")
        for i in range(c.GB):
            a(f"v_add_u32 v{T}, s24, v1")
            if i:
                a(f"v_add_u32 v{T}, {i*64}, v{T}")
            a(f"v_mul_u32_u24 v{T+1}, 2341, v{T}")
            a(f"v_lshrrev_b32 v{T+1}, 16, v{T+1}")
            a(f"v_mul_u32_u24 v{T+2}, 28, v{T+1}")
            a(f"v_sub_u32 v{T+2}, v{T}, v{T+2}")
            a(f"v_lshrrev_b32 v{T+3}, 2, v{T+1}")
            a(f"v_and_b32 v{T+3}, 2, v{T+3}")
            a(f"v_xor_b32 v{T+2}, v{T+2}, v{T+3}")
            a(f"v_lshlrev_b32 v{T+2}, 4, v{T+2}")
            a(f"v_mul_u32_u24 v{T+1}, {c.b_stride}, v{T+1}")
            a(f"v_add3_u32 v{c.vBoff+i}, v{T+1}, v{T+2}, s25")
            if i % 4:
                a(f"v_subrev_u32 v{c.vBoff+i}, {(i % 4)*1024}, v{c.vBoff+i}")
    a(f"s_mul_i32 s22, s16, {c.GA*1024}")
    a(f"s_mul_i32 s23, s16, {c.GB*1024}")
    a(f"s_add_u32 s23, s23, {c.A_bytes}")
    a("s_lshr_b32 s24, s16, 1")
    a("s_and_b32 s25, s16, 1")
    a("v_and_b32 v2, 15, v1")
    a("v_lshrrev_b32 v3, 4, v1")
    a(f"v_and_b32 v{T}, 7, v1")
    a(f"v_xor_b32 v{T}, v{T}, v3")
    a(f"v_lshlrev_b32 v{T}, 4, v{T}")
    a(f"s_mul_i32 s26, s24, {c.BM//c.WM}") if False else None
    a(f"s_mul_i32 s12, s24, {c.BM//c.WM*128}")
    a(f"v_lshl_add_u32 v{T+1}, v2, 7, v{T}")
    a(f"v_add_u32 v{T+1}, s12, v{T+1}")
    for s in range(c.NST):
        a(f"v_add_u32 v{c.vRd+4*s}, {s*c.stage}, v{T+1}")
        a(f"v_xor_b32 v{c.vRd+4*s+1}, 64, v{c.vRd+4*s}")
    if not c.btn:
        a(f"s_mul_i32 s12, s25, {c.BN//c.WN*128}")
        a(f"s_add_u32 s12, s12, {c.A_bytes}")
        a(f"v_lshl_add_u32 v{T+1}, v2, 7, v{T}")
        a(f"v_add_u32 v{T+1}, s12, v{T+1}")
        for s in range(c.NST):
            a(f"v_add_u32 v{c.vRd+4*s+2}, {s*c.stage}, v{T+1}")
            a(f"v_xor_b32 v{c.vRd+4*s+3}, 64, v{c.vRd+4*s+2}")
    else:
        a(f"v_lshrrev_b32 v{T}, 2, v2")
        a(f"v_lshl_add_u32 v{T}, v3, 3, v{T}")
        a(f"v_mul_u32_u24 v{T}, {c.RB}, v{T}")
        a(f"v_and_b32 v{T+1}, 3, v2")
        a(f"v_lshl_add_u32 v{T}, v{T+1}, 3, v{T}")
        a(f"s_mul_i32 s12, s25, {c.FN*32}")
        a(f"s_add_u32 s12, s12, {c.A_bytes}")
        a(f"v_add_u32 v{T}, s12, v{T}")
        a(f"v_and_b32 v{T+1}, 1, v3")
        a(f"v_lshlrev_b32 v{T+1}, 5, v{T+1}")
        a(f"s_mul_i32 s12, s25, {c.FN}")
        a("s_and_b32 s12, s12, 1")
        a("s_lshl_b32 s12, s12, 1")
        a("s_sub_u32 s12, 1, s12")
        a(f"v_mul_lo_u32 v{T+1}, v{T+1}, s12")
        a(f"v_add_u32 v{T+2}, v{T}, v{T+1}")
        a(f"v_sub_u32 v{T+3}, v{T}, v{T+1}")
        for s in range(c.NST):
            a(f"v_add_u32 v{c.vRd+4*s+2}, {s*c.stage}, v{T+2}")
            a(f"v_add_u32 v{c.vRd+4*s+3}, {s*c.stage}, v{T+3}")
    for i in range(c.FM * c.FN * 4):
        a(f"v_mov_b32 v{c.vAcc+i}, 0")

def gemm_issue(a, c, slot):
    if c.segA:
        a("s_lshr_b32 s24, s19, 5")
        a("s_and_b32 s20, s19, 31")
        a("s_lshl_b32 s20, s20, 7")
        a("s_cmp_eq_u32 s24, 0")
        a("s_cselect_b64 s[4:5], s[26:27], s[28:29]")
        a("s_cmp_eq_u32 s24, 2")
        a("s_cselect_b64 s[4:5], s[30:31], s[4:5]")
    else:
        a("s_lshl_b32 s20, s19, 7")
    if c.btn:
        a(f"s_mul_i32 s21, s19, {64*c.b_stride}")
    else:
        a("s_lshl_b32 s21, s19, 7")
    for i in range(c.GA):
        if i % 4 == 0:
            a(f"s_add_u32 m0, s22, {slot*c.stage + i*1024}")
            a("s_nop 0")
        off = (i % 4) * 1024
        a(f"buffer_load_dwordx4 v{c.vAoff+i}, s[4:7], s20 offen" + (f" offset:{off}" if off else "") + " lds")
    for i in range(c.GB):
        if i % 4 == 0:
            a(f"s_add_u32 m0, s23, {slot*c.stage + i*1024}")
            a("s_nop 0")
        off = (i % 4) * 1024
        a(f"buffer_load_dwordx4 v{c.vBoff+i}, s[8:11], s21 offen" + (f" offset:{off}" if off else "") + " lds")
    a("s_add_u32 s19, s19, 1")

def frag_reads(c, slot, kk):
    r = []
    for i in range(c.FM):
        d = c.vFA + (kk * c.FM + i) * 4
        r.append(f"ds_read_b128 v[{d}:{d+3}], v{c.vRd+4*slot+kk} offset:{i*2048}")
    for j in range(c.FN):
        d = c.vFB + (kk * c.FN + j) * 4
        if not c.btn:
            r.append(f"ds_read_b128 v[{d}:{d+3}], v{c.vRd+4*slot+2+kk} offset:{j*2048}")
        else:
            base = c.vRd + 4 * slot + 2 + (j & 1)
            o = j * 32 + kk * 32 * c.RB
            r.append(f"ds_read_b64_tr_b16 v[{d}:{d+1}], v{base} offset:{o}")
            r.append(f"ds_read_b64_tr_b16 v[{d+2}:{d+3}], v{base} offset:{o + 4*c.RB}")
    return r

def mfmas(c, kk):
    r = []
    for i in range(c.FM):
        for j in range(c.FN):
            fa = c.vFA + (kk * c.FM + i) * 4
            fb = c.vFB + (kk * c.FN + j) * 4
            d = c.vAcc + (i * c.FN + j) * 4
            x, y = (fb, fa) if c.swap else (fa, fb)
            r.append(f"v_mfma_f32_16x16x32_bf16 v[{d}:{d+3}], v[{x}:{x+3}], v[{y}:{y+3}], v[{d}:{d+3}]")
    return r

def gemm_loop(a, c):
    P = c.pfx
    for s in range(c.NST - 1):
        gemm_issue(a, c, s)
    a.lab(f"{P}_loop")
    for s in range(c.NST):
        a(f"s_add_u32 s24, s17, {c.NST-2}")
        a("s_cmp_lt_u32 s24, s18")
        a(f"s_cbranch_scc1 {P}_w{s}")
        a("s_waitcnt vmcnt(0)")
        a.lab(f"{P}_w{s}")
        a(f"s_waitcnt vmcnt({c.L*(c.NST-2)})")
        a("s_barrier")
        a("s_cmp_ge_u32 s19, s18")
        a(f"s_cbranch_scc1 {P}_s{s}")
        gemm_issue(a, c, (s + c.NST - 1) % c.NST)
        a.lab(f"{P}_s{s}")
        r0 = frag_reads(c, s, 0)
        r1 = frag_reads(c, s, 1)
        for x in r0:
            a(x)
        n1 = min(12, len(r1))
        for x in r1[:n1]:
            a(x)
        a(f"s_waitcnt lgkmcnt({n1})")
        rest = r1[n1:]
        m0 = mfmas(c, 0)
        for idx, x in enumerate(m0):
            a(x)
            if idx < len(rest):
                a(rest[idx])
        a("s_waitcnt lgkmcnt(0)")
        for x in mfmas(c, 1):
            a(x)
        a("s_add_u32 s17, s17, 1")
        a("s_cmp_ge_u32 s17, s18")
        a(f"s_cbranch_scc1 {P}_done")
    a(f"s_branch {P}_loop")
    a.lab(f"{P}_done")
    a("s_nop 7")
    a("s_nop 7")

def gen_k1(a, name):
    cd = GemmCfg("k1d", 128, 128, 4, btn=False, a_stride=1024, b_stride=1024, swap=False)
    cm = GemmCfg("k1m", 128, 224, 3, btn=True, a_stride=1024, b_stride=3584, swap=True)
    kernel_header(a, name)
    a("s_cmp_ge_u32 s2, 256")
    a("s_cbranch_scc1 L_k1_end")
    a(f"s_load_dwordx2 s[32:33], s[0:1], {KA_WS}")
    a(f"s_load_dwordx2 s[34:35], s[0:1], {KA_DR}")
    a(f"s_load_dwordx2 s[36:37], s[0:1], {KA_DI}")
    a(f"s_load_dwordx2 s[38:39], s[0:1], {KA_W1}")
    a(f"s_load_dwordx2 s[40:41], s[0:1], {KA_B1}")
    a(f"s_load_dwordx2 s[42:43], s[0:1], {KA_W2}")
    a("s_lshr_b32 s44, s2, 4")
    a("s_and_b32 s45, s2, 15")
    a("s_lshl_b32 s46, s44, 7")
    a("s_waitcnt lgkmcnt(0)")
    a("s_mov_b32 s24, s32")
    a("s_mov_b32 s25, s33")
    add64(a, 24, 25, WS_XN)
    srd(a, 4, 24, 25, 2048*512*2)
    a("s_mov_b32 s17, 0")
    a("s_mov_b32 s18, 8")
    a("s_mov_b32 s19, 0")
    a("s_cmp_ge_u32 s45, 8")
    a("s_cbranch_scc1 L_k1_mlp")
    a("s_cmp_lt_u32 s45, 4")
    a("s_cselect_b64 s[24:25], s[34:35], s[36:37]")
    srd(a, 8, 24, 25, 512*512*2)
    a("s_and_b32 s47, s45, 3")
    a("s_lshl_b32 s47, s47, 7")
    gemm_setup(a, cd, 46, 47)
    gemm_loop(a, cd)
    c = cd
    T = c.vTmp
    a("s_mov_b32 s24, s32")
    a("s_mov_b32 s25, s33")
    add64(a, 24, 25, WS_BT)
    srd(a, 12, 24, 25, 512*BT_STRIDE)
    a("s_cmp_lt_u32 s45, 4")
    a("s_cselect_b32 s24, 0, 4096")
    a("s_mov_b32 s26, 1.0")
    a("s_cselect_b32 s26, s26, -1.0")
    a("s_lshr_b32 s27, s16, 1")
    a("s_and_b32 s28, s16, 1")
    a(f"s_mul_i32 s29, s28, {c.BN//c.WN}")
    a("s_add_u32 s29, s29, s47")
    a(f"s_mul_i32 s30, s27, {c.BM//c.WM}")
    a("s_add_u32 s30, s30, s46")
    a("s_lshl_b32 s30, s30, 1")
    a("s_add_u32 s30, s30, s24")
    a("v_and_b32 v2, 15, v1")
    a("v_lshrrev_b32 v3, 4, v1")
    a(f"v_add_u32 v2, s29, v2")
    a(f"s_mov_b32 s31, {BT_STRIDE}")
    a("v_mul_lo_u32 v2, v2, s31")
    a("v_lshl_add_u32 v2, v3, 3, v2")
    a("v_add_u32 v2, s30, v2")
    for j in range(c.FN):
        a(f"v_add_u32 v3, {j*16*BT_STRIDE}, v2")
        for i in range(c.FM):
            d = c.vAcc + (i * c.FN + j) * 4
            for r in range(4):
                a(f"v_mul_f32 v{T+r}, s26, v{d+r}")
            a(f"v_cvt_pk_bf16_f32 v{T+4}, v{T}, v{T+1}")
            a(f"v_cvt_pk_bf16_f32 v{T+5}, v{T+2}, v{T+3}")
            a(f"buffer_store_dwordx2 v[{T+4}:{T+5}], v3, s[12:15], 0 offen offset:{i*32}")
            a("s_nop 1")
    a("s_lshl_b32 s24, s44, 3")
    a("s_add_u32 s24, s24, s45")
    a("s_cmp_ge_u32 s24, 112")
    a("s_cbranch_scc1 L_k1_end")
    a("s_lshr_b32 s25, s24, 2")
    a("s_and_b32 s26, s24, 3")
    srd(a, 8, 42, 43, 1792*512*2)
    a("s_barrier")
    a("s_lshl_b32 s27, s16, 8")
    a(f"s_mul_i32 s28, s25, {64*1024}")
    a("s_lshl_b32 s29, s26, 8")
    a("s_add_u32 s28, s28, s29")
    for i in range(4):
        a(f"v_add_u32 v{T}, s27, v1")
        if i:
            a(f"v_add_u32 v{T}, {i*64}, v{T}")
        a(f"v_lshrrev_b32 v{T+1}, 4, v{T}")
        a(f"v_and_b32 v{T+2}, 15, v{T}")
        a(f"v_and_b32 v{T+3}, 3, v{T+1}")
        a(f"v_lshrrev_b32 v{T+4}, 1, v{T+1}")
        a(f"v_and_b32 v{T+4}, 4, v{T+4}")
        a(f"v_or_b32 v{T+3}, v{T+3}, v{T+4}")
        a(f"v_lshlrev_b32 v{T+3}, 1, v{T+3}")
        a(f"v_xor_b32 v{T+2}, v{T+2}, v{T+3}")
        a(f"v_lshlrev_b32 v{T+2}, 4, v{T+2}")
        a(f"v_lshl_add_u32 v{T+8+i}, v{T+1}, 10, v{T+2}")
        if i:
            a(f"v_subrev_u32 v{T+8+i}, {i*1024}, v{T+8+i}")
    a("s_lshl_b32 s29, s16, 12")
    a("s_mov_b32 m0, s29")
    a("s_nop 0")
    for i in range(4):
        a(f"buffer_load_dwordx4 v{T+8+i}, s[8:11], s28 offen" + (f" offset:{i*1024}" if i else "") + " lds")
    a("s_waitcnt vmcnt(0)")
    a("s_barrier")
    a("v_and_b32 v2, 15, v1")
    a("v_lshrrev_b32 v3, 4, v1")
    a(f"v_lshrrev_b32 v{T}, 2, v2")
    a(f"v_lshl_add_u32 v{T+1}, v3, 3, v{T}")
    a(f"v_lshlrev_b32 v{T+1}, 8, v{T+1}")
    a(f"v_and_b32 v{T+2}, 1, v3")
    a(f"v_lshl_or_b32 v{T+2}, v{T+2}, 2, v{T}")
    a(f"v_lshl_add_u32 v{T+1}, v{T+2}, 5, v{T+1}")
    a(f"v_and_b32 v{T+2}, 3, v2")
    a(f"v_lshl_add_u32 v{T+1}, v{T+2}, 3, v{T+1}")
    a("s_lshl_b32 s29, s16, 6")
    a(f"v_xor_b32 v{T+2}, s29, v{T+1}")
    a(f"v_xor_b32 v{T+3}, 32, v{T+2}")
    F = c.vFA
    for fi in range(2):
        for kk in range(2):
            d = F + (fi * 2 + kk) * 4
            a(f"ds_read_b64_tr_b16 v[{d}:{d+1}], v{T+2+fi} offset:{kk*32*256}")
            a(f"ds_read_b64_tr_b16 v[{d+2}:{d+3}], v{T+2+fi} offset:{kk*32*256 + 4*256}")
    a("s_lshl_b32 s29, s26, 7")
    a("s_lshl_b32 s30, s16, 5")
    a("s_add_u32 s29, s29, s30")
    a(f"v_add_u32 v{T}, s29, v2")
    a(f"s_mov_b32 s31, {BT_STRIDE}")
    a(f"v_mul_lo_u32 v{T}, v{T}, s31")
    a(f"v_lshl_add_u32 v{T}, v3, 4, v{T}")
    a("s_lshl_b32 s30, s25, 7")
    a(f"s_add_u32 s30, s30, {4096*2}")
    a(f"v_add_u32 v{T}, s30, v{T}")
    a(f"v_add_u32 v{T+1}, {16*BT_STRIDE}, v{T}")
    a("s_waitcnt lgkmcnt(0)")
    for fi in range(2):
        for kk in range(2):
            d = F + (fi * 2 + kk) * 4
            a(f"buffer_store_dwordx4 v[{d}:{d+3}], v{T+fi}, s[12:15], 0 offen offset:{kk*64}")
    a("s_branch L_k1_end")
    a.lab("L_k1_mlp")
    c = cm
    T = c.vTmp
    srd(a, 8, 38, 39, 512*1792*2)
    a("s_sub_u32 s47, s45, 8")
    a("s_mul_i32 s47, s47, 224")
    gemm_setup(a, cm, 46, 47)
    gemm_loop(a, cm)
    a("s_mov_b32 s24, s32")
    a("s_mov_b32 s25, s33")
    add64(a, 24, 25, WS_H)
    srd(a, 12, 24, 25, 2048*4096)
    srd(a, 8, 40, 41, 1792*2)
    a("s_lshr_b32 s27, s16, 1")
    a("s_and_b32 s28, s16, 1")
    a(f"s_mul_i32 s29, s28, {c.BN//c.WN}")
    a("s_add_u32 s29, s29, s47")
    a(f"s_mul_i32 s30, s27, {c.BM//c.WM}")
    a("s_add_u32 s30, s30, s46")
    a("v_and_b32 v2, 15, v1")
    a("v_lshrrev_b32 v3, 4, v1")
    a("v_lshlrev_b32 v3, 3, v3")
    a("s_lshl_b32 s29, s29, 1")
    a("v_add_u32 v3, s29, v3")
    a("v_add_u32 v2, s30, v2")
    a("v_lshl_add_u32 v2, v2, 12, v3")
    Bq = c.vFA
    for j in range(c.FN):
        a(f"buffer_load_dwordx2 v[{Bq+2*j}:{Bq+2*j+1}], v3, s[8:11], 0 offen offset:{j*32}")
    a("s_waitcnt vmcnt(0)")
    Bf = c.vFB
    for j in range(c.FN):
        for h in range(2):
            a(f"v_lshlrev_b32 v{Bf+4*j+2*h}, 16, v{Bq+2*j+h}")
            a(f"v_and_b32 v{Bf+4*j+2*h+1}, 0xffff0000, v{Bq+2*j+h}")
    for i in range(c.FM):
        a(f"v_add_u32 v{T+8}, {i*16*4096}, v2")
        for j in range(c.FN):
            d = c.vAcc + (i * c.FN + j) * 4
            for h in range(2):
                a(f"v_cvt_pk_bf16_f32 v{T}, v{d+2*h}, v{d+2*h+1}")
                a(f"v_lshlrev_b32 v{T+1}, 16, v{T}")
                a(f"v_and_b32 v{T+2}, 0xffff0000, v{T}")
                a(f"v_add_f32 v{T+1}, v{T+1}, v{Bf+4*j+2*h}")
                a(f"v_add_f32 v{T+2}, v{T+2}, v{Bf+4*j+2*h+1}")
                a(f"v_cvt_pk_bf16_f32 v{T}, v{T+1}, v{T+2}")
                a(f"v_lshlrev_b32 v{T+1}, 16, v{T}")
                a(f"v_and_b32 v{T+2}, 0xffff0000, v{T}")
                a(f"v_max_f32 v{T+1}, 0, v{T+1}")
                a(f"v_max_f32 v{T+2}, 0, v{T+2}")
                a(f"v_mul_f32 v{T+1}, v{T+1}, v{T+1}")
                a(f"v_mul_f32 v{T+2}, v{T+2}, v{T+2}")
                a(f"v_cvt_pk_bf16_f32 v{T+4+h}, v{T+1}, v{T+2}")
            a(f"buffer_store_dwordx2 v[{T+4}:{T+5}], v{T+8}, s[12:15], 0 offen offset:{j*32}")
            a("s_nop 1")
    a.lab("L_k1_end")
    a("s_endpgm")
    nv = max(cd.nvgpr, cm.nvgpr)
    return kernel_desc(name, nv, 64), max(cd.lds(), cm.lds())

def gen_k2(a, name):
    c = GemmCfg("k2", 128, 128, 4, btn=False, a_stride=4096, b_stride=BT_STRIDE, swap=True, segA=True)
    T = c.vTmp
    kernel_header(a, name)
    a("s_cmp_ge_u32 s2, 256")
    a("s_cbranch_scc1 L_k2_end")
    a(f"s_load_dwordx2 s[26:27], s[0:1], {KA_CR}")
    a(f"s_load_dwordx2 s[28:29], s[0:1], {KA_CI}")
    a(f"s_load_dwordx2 s[32:33], s[0:1], {KA_WS}")
    a("s_and_b32 s44, s2, 7")
    a("s_lshr_b32 s45, s2, 3")
    a("s_lshr_b32 s46, s44, 1")
    a("s_and_b32 s47, s44, 1")
    a("s_lshl_b32 s47, s47, 3")
    a("s_lshr_b32 s48, s45, 2")
    a("s_add_u32 s47, s47, s48")
    a("s_and_b32 s48, s45, 3")
    a("s_lshl_b32 s47, s47, 7")
    a("s_lshl_b32 s48, s48, 7")
    a("s_mul_i32 s17, s46, 23")
    a("s_add_u32 s18, s17, 23")
    a("s_mov_b32 s19, s17")
    a("s_waitcnt lgkmcnt(0)")
    a("s_mov_b32 s30, s32")
    a("s_mov_b32 s31, s33")
    add64(a, 30, 31, WS_H)
    a("s_and_b32 s27, s27, 0xffff")
    a("s_and_b32 s29, s29, 0xffff")
    a("s_and_b32 s31, s31, 0xffff")
    srd(a, 4, 26, 27, 2048*4096)
    a("s_mov_b32 s24, s32")
    a("s_mov_b32 s25, s33")
    add64(a, 24, 25, WS_BT)
    srd(a, 8, 24, 25, 512*BT_STRIDE)
    gemm_setup(a, c, 47, 48)
    gemm_loop(a, c)
    a("s_mov_b32 s24, s32")
    a("s_mov_b32 s25, s33")
    add64(a, 24, 25, WS_P)
    srd(a, 12, 24, 25, NSPLIT*2048*512*4)
    a("s_lshr_b32 s27, s16, 1")
    a("s_and_b32 s28, s16, 1")
    a(f"s_mul_i32 s29, s28, {c.BN//c.WN}")
    a("s_add_u32 s29, s29, s48")
    a(f"s_mul_i32 s30, s27, {c.BM//c.WM}")
    a("s_add_u32 s30, s30, s47")
    a("s_lshl_b32 s31, s46, 22")
    a("v_and_b32 v2, 15, v1")
    a("v_lshrrev_b32 v3, 4, v1")
    a("v_lshlrev_b32 v3, 4, v3")
    a("s_lshl_b32 s29, s29, 2")
    a("v_add_u32 v3, s29, v3")
    a("v_add_u32 v2, s30, v2")
    a("v_lshl_add_u32 v2, v2, 11, v3")
    for i in range(c.FM):
        a(f"v_add_u32 v{T}, {i*16*2048}, v2")
        for j in range(c.FN):
            d = c.vAcc + (i * c.FN + j) * 4
            a(f"buffer_store_dwordx4 v[{d}:{d+3}], v{T}, s[12:15], s31 offen offset:{j*64}")
        a("s_nop 1")
    a.lab("L_k2_end")
    a("s_endpgm")
    return kernel_desc(name, c.nvgpr, 64), c.lds()

def gen_k3(a, name):
    kernel_header(a, name)
    a("s_cmp_ge_u32 s2, 512")
    a("s_cbranch_scc1 L_k3_end")
    a(f"s_load_dwordx2 s[4:5], s[0:1], {KA_X}")
    a(f"s_load_dwordx2 s[6:7], s[0:1], {KA_B2}")
    a(f"s_load_dwordx2 s[24:25], s[0:1], {KA_OUT}")
    a(f"s_load_dwordx2 s[26:27], s[0:1], {KA_WS}")
    a("s_lshl_b32 s3, s2, 8")
    a("v_add_u32 v1, s3, v0")
    a("v_lshlrev_b32 v2, 4, v1")
    a("v_lshlrev_b32 v3, 5, v1")
    a("v_and_b32 v4, 63, v1")
    a("v_lshlrev_b32 v4, 4, v4")
    a("s_waitcnt lgkmcnt(0)")
    srd(a, 8, 4, 5, 2048*512*2)
    srd(a, 12, 6, 7, 512*2)
    srd(a, 16, 24, 25, 2048*512*2)
    add64(a, 26, 27, WS_P)
    srd(a, 20, 26, 27, NSPLIT*2048*512*4)
    a("buffer_load_dwordx4 v[8:11], v2, s[8:11], 0 offen")
    a("buffer_load_dwordx4 v[12:15], v4, s[12:15], 0 offen")
    for s in range(NSPLIT):
        a(f"s_mov_b32 s28, {s << 22}")
        a(f"buffer_load_dwordx4 v[{16+8*s}:{19+8*s}], v3, s[20:23], s28 offen")
        a(f"buffer_load_dwordx4 v[{20+8*s}:{23+8*s}], v3, s[20:23], s28 offen offset:16")
    a("s_waitcnt vmcnt(0)")
    for s in range(1, NSPLIT):
        for e in range(8):
            a(f"v_add_f32 v{16+e}, v{16+e}, v{16+8*s+e}")
    for i in range(4):
        a(f"v_lshlrev_b32 v5, 16, v{8+i}")
        a(f"v_and_b32 v6, 0xffff0000, v{8+i}")
        a(f"v_add_f32 v{16+2*i}, v{16+2*i}, v5")
        a(f"v_add_f32 v{17+2*i}, v{17+2*i}, v6")
        a(f"v_lshlrev_b32 v5, 16, v{12+i}")
        a(f"v_and_b32 v6, 0xffff0000, v{12+i}")
        a(f"v_add_f32 v{16+2*i}, v{16+2*i}, v5")
        a(f"v_add_f32 v{17+2*i}, v{17+2*i}, v6")
    for i in range(4):
        a(f"v_cvt_pk_bf16_f32 v{8+i}, v{16+2*i}, v{17+2*i}")
    a("buffer_store_dwordx4 v[8:11], v2, s[16:19], 0 offen")
    a.lab("L_k3_end")
    a("s_endpgm")
    return kernel_desc(name, 16 + 8 * NSPLIT, 32)

def main():
    a = Asm()
    hdr = open("cdna_kernels/" + KN + ".s.ref").read().split("; Override launch geometry")[0]
    descs = []
    body = Asm()
    body.raw('.amdgcn_target "amdgcn-amd-amdhsa--gfx950"')
    body.raw(".text")
    descs.append(gen_ln(body, "ln_kernel"))
    d, lds1 = gen_k1(body, "gemm1_kernel"); descs.append(d)
    d, lds2 = gen_k2(body, "gemm2_kernel"); descs.append(d)
    descs.append(gen_k3(body, "reduce_kernel"))
    out = hdr
    out += "; @launch kernel=ln_kernel grid=(512,1,1) block=(256,1,1) lds=0\n"
    out += f"; @launch kernel=gemm1_kernel grid=(256,1,1) block=(256,1,1) lds={lds1}\n"
    out += f"; @launch kernel=gemm2_kernel grid=(256,1,1) block=(256,1,1) lds={lds2}\n"
    out += "; @launch kernel=reduce_kernel grid=(512,1,1) block=(256,1,1) lds=0\n"
    out += body.text()
    out += '.section .rodata,"a"\n' + "".join(descs)
    dst = sys.argv[1] if len(sys.argv) > 1 else "cdna_kernels/" + KN + ".s"
    open(dst, "w").write(out)

main()
```

```python
import sys, os

KN = "parallel_sum__spectral_fnet__dense_activation_squared_relu__prompt"
KA_X, KA_CR, KA_CI, KA_DR, KA_DI, KA_BX, KA_W1, KA_B1, KA_W2, KA_B2, KA_OUT, KA_DBG, KA_WS = [8*i for i in range(13)]
WS_XN = 0
WS_BT = 2 << 20
BT_STRIDE = 5888 * 2
WS_H = 8 << 20
WS_P = 16 << 20
NSPLIT = 4
ROT2 = int(os.environ.get('ROT2', '2'))
STAMP = os.environ.get("STAMP")
ILV = int(os.environ.get('ILV', '1'))

class Asm:
    def __init__(s):
        s.l = []
    def __call__(s, t):
        s.l.append("    " + t)
    def lab(s, t):
        s.l.append(t + ":")
    def raw(s, t):
        s.l.append(t)
    def text(s):
        return "\n".join(s.l) + "\n"

def srd(a, d, lo, hi, nbytes):
    a(f"s_mov_b32 s{d}, s{lo}")
    a(f"s_and_b32 s{d+1}, s{hi}, 0xffff")
    a(f"s_mov_b32 s{d+2}, {nbytes}")
    a(f"s_mov_b32 s{d+3}, 0x00020000")

def srd_off(a, d, lo, hi, off, nbytes):
    a(f"s_add_u32 s{d}, s{lo}, {off}")
    a(f"s_addc_u32 s{d+1}, s{hi}, 0")
    a(f"s_and_b32 s{d+1}, s{d+1}, 0xffff")
    a(f"s_mov_b32 s{d+2}, {nbytes}")
    a(f"s_mov_b32 s{d+3}, 0x00020000")

def kernel_header(a, name):
    a.raw(f".globl {name}")
    a.raw(".p2align 8")
    a.raw(f".type {name},@function")
    a.lab(name)

def kernel_desc(name, vgpr, sgpr=102, accum=None):
    if accum is None:
        accum = (vgpr + 3) // 4 * 4
    return f""".p2align 6
.amdhsa_kernel {name}
  .amdhsa_next_free_vgpr {vgpr}
  .amdhsa_next_free_sgpr {sgpr}
  .amdhsa_accum_offset {accum}
  .amdhsa_group_segment_fixed_size 0
  .amdhsa_kernarg_size 104
  .amdhsa_user_sgpr_count 2
  .amdhsa_user_sgpr_kernarg_segment_ptr 1
  .amdhsa_system_sgpr_workgroup_id_x 1
.end_amdhsa_kernel
"""

def stamp(a, idx):
    if not STAMP: return
    a(f"s_memtime s[{60+2*idx}:{61+2*idx}]")
def rt_start(a):
    if not os.environ.get("RT"): return
    a("s_memrealtime s[76:77]")
def rt_end(a, kidx):
    if not os.environ.get("RT"): return
    k = rt_end.n; rt_end.n += 1
    a("s_waitcnt vmcnt(0) lgkmcnt(0)")
    a("s_memrealtime s[78:79]")
    a(f"s_load_dwordx2 s[56:57], s[0:1], {KA_WS}")
    a("s_waitcnt lgkmcnt(0)")
    srd_off(a, 52, 56, 57, (64 << 20) + kidx * 65536, 65536)
    a("v_cmp_eq_u32 vcc, 0, v0")
    a("s_and_saveexec_b64 s[58:59], vcc")
    a(f"s_cbranch_execz L_rt_skip{k}")
    a("s_lshl_b32 s56, s2, 4")
    a("v_mov_b32 v2, s56")
    a("v_mov_b32 v4, s76")
    a("v_mov_b32 v5, s77")
    a("v_mov_b32 v6, s78")
    a("v_mov_b32 v7, s79")
    a("buffer_store_dwordx4 v[4:7], v2, s[52:55], 0 offen")
    a("s_waitcnt vmcnt(0)")
    a.lab(f"L_rt_skip{k}")
rt_end.n = 0
def stamp_flush(a, n, wgsel):
    if not STAMP: return
    k = stamp_flush.n; stamp_flush.n += 1
    a("s_waitcnt vmcnt(0) lgkmcnt(0)")
    a(f"s_cmp_lg_u32 s2, {wgsel}")
    a(f"s_cbranch_scc1 L_st_skip{k}")
    a(f"s_load_dwordx2 s[56:57], s[0:1], {KA_DBG}")
    a("s_waitcnt lgkmcnt(0)")
    srd(a, 52, 56, 57, 256)
    a("v_cmp_eq_u32 vcc, 0, v0")
    a("s_and_saveexec_b64 s[58:59], vcc")
    a(f"s_cbranch_execz L_st_skip{k}")
    a("v_mov_b32 v2, 0")
    for i in range(n):
        a(f"s_sub_u32 s56, s{60+2*i}, s60")
        a("v_mov_b32 v3, s56")
        a(f"buffer_store_dword v3, v2, s[52:55], 0 offen offset:{4*i}")
    a("s_waitcnt vmcnt(0)")
    a.lab(f"L_st_skip{k}")
stamp_flush.n = 0

def wave_sum(a, v, t, vp32):
    for x in (1, 2, 4, 8, 16):
        a(f"ds_swizzle_b32 v{t}, v{v} offset:{(x << 10) | 0x1f}")
        a("s_waitcnt lgkmcnt(0)")
        a(f"v_add_f32 v{v}, v{v}, v{t}")
    a(f"ds_bpermute_b32 v{t}, v{vp32}, v{v}")
    a("s_waitcnt lgkmcnt(0)")
    a(f"v_add_f32 v{v}, v{v}, v{t}")

def round_bf16(a, d, s):
    a(f"v_cvt_pk_bf16_f32 v{d}, v{s}, v{s}")
    a(f"v_lshlrev_b32 v{d}, 16, v{d}")

def gen_ln(a, name):
    kernel_header(a, name)
    a("s_cmp_ge_u32 s2, 512")
    a("s_cbranch_scc1 L_ln_done")
    a(f"s_load_dwordx2 s[4:5], s[0:1], {KA_X}")
    a(f"s_load_dwordx2 s[6:7], s[0:1], {KA_WS}")
    a("v_and_b32 v1, 63, v0")
    a("v_lshrrev_b32 v2, 6, v0")
    a("s_lshl_b32 s3, s2, 2")
    a("v_add_u32 v2, s3, v2")
    a("v_lshlrev_b32 v2, 10, v2")
    a("v_lshl_add_u32 v2, v1, 4, v2")
    a("v_xor_b32 v3, 32, v1")
    a("v_lshlrev_b32 v3, 2, v3")
    a("s_waitcnt lgkmcnt(0)")
    srd(a, 8, 4, 5, 2048*512*2)
    srd_off(a, 12, 6, 7, WS_XN, 2048*512*2)
    a("buffer_load_dwordx4 v[4:7], v2, s[8:11], 0 offen")
    a("s_waitcnt vmcnt(0)")
    for i in range(4):
        a(f"v_lshlrev_b32 v{10+2*i}, 16, v{4+i}")
        a(f"v_and_b32 v{11+2*i}, 0xffff0000, v{4+i}")
    a("v_add_f32 v20, v10, v11")
    for i in range(2, 8):
        a(f"v_add_f32 v20, v20, v{10+i}")
    wave_sum(a, 20, 21, 3)
    a("v_mul_f32 v20, 0x3b000000, v20")
    a("v_mov_b32 v22, 0")
    for i in range(8):
        a(f"v_sub_f32 v23, v{10+i}, v20")
        a("v_fmac_f32 v22, v23, v23")
    wave_sum(a, 22, 21, 3)
    a("v_mul_f32 v22, 0x3b000000, v22")
    round_bf16(a, 20, 20)
    round_bf16(a, 22, 22)
    a("v_add_f32 v22, 0x3727c5ac, v22")
    round_bf16(a, 22, 22)
    a("v_sqrt_f32 v22, v22")
    a("s_nop 0")
    round_bf16(a, 22, 22)
    a("v_rcp_f32 v22, v22")
    a("s_nop 0")
    for i in range(8):
        a(f"v_sub_f32 v{10+i}, v{10+i}, v20")
    for i in range(4):
        a(f"v_cvt_pk_bf16_f32 v{4+i}, v{10+2*i}, v{11+2*i}")
    for i in range(4):
        a(f"v_lshlrev_b32 v{10+2*i}, 16, v{4+i}")
        a(f"v_and_b32 v{11+2*i}, 0xffff0000, v{4+i}")
    for i in range(8):
        a(f"v_mul_f32 v{10+i}, v{10+i}, v22")
    for i in range(4):
        a(f"v_cvt_pk_bf16_f32 v{4+i}, v{10+2*i}, v{11+2*i}")
    a("buffer_store_dwordx4 v[4:7], v2, s[12:15], 0 offen")
    a.lab("L_ln_done")
    a("s_endpgm")
    return kernel_desc(name, 32, 32)

class GemmCfg:
    def __init__(s, pfx, BM, BN, NST, btn=False, a_stride=1024, b_stride=1024, swap=False, segA=False, stats=False):
        s.stats = stats
        s.pfx = pfx; s.BM = BM; s.BN = BN; s.NST = NST; s.btn = btn
        s.a_stride = a_stride; s.b_stride = b_stride; s.swap = swap; s.segA = segA
        s.WM = 2; s.WN = 2; s.NW = 4
        s.FM = BM // s.WM // 16; s.FN = BN // s.WN // 16
        s.A_bytes = BM * 128
        s.RB = BN * 2
        s.B_bytes = 64 * s.RB if btn else BN * 128
        s.stage = s.A_bytes + s.B_bytes
        s.GA = BM // 8 // s.NW
        s.GB = s.B_bytes // 1024 // s.NW
        assert s.B_bytes % (1024 * s.NW) == 0
        s.L = s.GA + s.GB
        p = 4
        s.vAoff = p
        s.vBoff = p + s.GA
        s.vRd = p; p += 4 * NST
        p = max(p, 4 + s.L)
        p = (p + 3) // 4 * 4
        s.vFA = p; p += 2 * s.FM * 4
        s.vFB = p; p += 2 * s.FN * 4
        s.vAcc = p; p += s.FM * s.FN * 4
        s.vTmp = p; p += 8
        if stats:
            s.vCS = p; p += 4 * s.FN
            s.vOne = p; p += 4
            s.vTch = 124; s.vDum = 128
        else:
            p += 8
            s.vTch = p; p += 4
            s.vDum = p; p += 4
        s.PD = int(os.environ.get("PD", "6"))
        s.nvgpr = p
        assert p <= 256, p
        s.L_M = s.stage * NST
        s.L_R = s.L_M + 512
        s.L_CS = s.L_R + 512
    def lds(s):
        return s.stage * s.NST + (1024 if s.stats else 0)

def loader_setup(a, c, sArow, sBrow):
    T = c.vTmp
    a("v_lshrrev_b32 v2, 3, v1")
    a("v_and_b32 v3, 7, v1")
    a("v_xor_b32 v3, v3, v2")
    a("v_lshlrev_b32 v3, 4, v3")
    a(f"s_mul_i32 s24, s16, {c.GA*8}")
    a(f"s_add_u32 s24, s24, s{sArow}")
    a(f"v_add_u32 v{T}, s24, v2")
    a(f"s_mov_b32 s25, {c.a_stride}")
    a(f"v_mul_lo_u32 v{T}, v{T}, s25")
    a(f"v_add_u32 v{T}, v{T}, v3")
    for i in range(c.GA):
        a(f"v_add_u32 v{c.vAoff+i}, {i*8*c.a_stride - (i % 4)*1024}, v{T}")
    if not c.btn:
        a(f"s_mul_i32 s24, s16, {c.GB*8}")
        a(f"s_add_u32 s24, s24, s{sBrow}")
        a(f"v_add_u32 v{T}, s24, v2")
        a(f"s_mov_b32 s25, {c.b_stride}")
        a(f"v_mul_lo_u32 v{T}, v{T}, s25")
        a(f"v_add_u32 v{T}, v{T}, v3")
        for i in range(c.GB):
            a(f"v_add_u32 v{c.vBoff+i}, {i*8*c.b_stride - (i % 4)*1024}, v{T}")
    else:
        assert c.RB == 448
        a(f"s_mul_i32 s24, s16, {c.GB*64}")
        a(f"s_lshl_b32 s25, s{sBrow}, 1")
        for i in range(c.GB):
            a(f"v_add_u32 v{T}, s24, v1")
            if i:
                a(f"v_add_u32 v{T}, {i*64}, v{T}")
            a(f"v_mul_u32_u24 v{T+1}, 2341, v{T}")
            a(f"v_lshrrev_b32 v{T+1}, 16, v{T+1}")
            a(f"v_mul_u32_u24 v{T+2}, 28, v{T+1}")
            a(f"v_sub_u32 v{T+2}, v{T}, v{T+2}")
            a(f"v_lshrrev_b32 v{T+3}, 2, v{T+1}")
            a(f"v_and_b32 v{T+3}, 2, v{T+3}")
            a(f"v_xor_b32 v{T+2}, v{T+2}, v{T+3}")
            a(f"v_lshlrev_b32 v{T+2}, 4, v{T+2}")
            a(f"v_mul_u32_u24 v{T+1}, {c.b_stride}, v{T+1}")
            a(f"v_add3_u32 v{c.vBoff+i}, v{T+1}, v{T+2}, s25")
            if i % 4:
                a(f"v_subrev_u32 v{c.vBoff+i}, {(i % 4)*1024}, v{c.vBoff+i}")
    a(f"s_mul_i32 s22, s16, {c.GA*1024}")
    a(f"s_mul_i32 s23, s16, {c.GB*1024}")
    a(f"s_add_u32 s23, s23, {c.A_bytes}")

def compute_setup(a, c):
    T = c.vTmp
    a("s_lshr_b32 s24, s16, 1")
    a("s_and_b32 s25, s16, 1")
    a("v_and_b32 v2, 15, v1")
    a("v_lshrrev_b32 v3, 4, v1")
    a(f"v_and_b32 v{T}, 7, v1")
    a(f"v_xor_b32 v{T}, v{T}, v3")
    a(f"v_lshlrev_b32 v{T}, 4, v{T}")
    a(f"s_mul_i32 s12, s24, {c.BM//c.WM*128}")
    a(f"v_lshl_add_u32 v{T+1}, v2, 7, v{T}")
    a(f"v_add_u32 v{T+1}, s12, v{T+1}")
    for s in range(c.NST):
        a(f"v_add_u32 v{c.vRd+4*s}, {s*c.stage}, v{T+1}")
        a(f"v_xor_b32 v{c.vRd+4*s+1}, 64, v{c.vRd+4*s}")
    if not c.btn:
        a(f"s_mul_i32 s12, s25, {c.BN//c.WN*128}")
        a(f"s_add_u32 s12, s12, {c.A_bytes}")
        a(f"v_lshl_add_u32 v{T+1}, v2, 7, v{T}")
        a(f"v_add_u32 v{T+1}, s12, v{T+1}")
        for s in range(c.NST):
            a(f"v_add_u32 v{c.vRd+4*s+2}, {s*c.stage}, v{T+1}")
            a(f"v_xor_b32 v{c.vRd+4*s+3}, 64, v{c.vRd+4*s+2}")
    else:
        a(f"v_lshrrev_b32 v{T}, 2, v2")
        a(f"v_lshl_add_u32 v{T}, v3, 3, v{T}")
        a(f"v_mul_u32_u24 v{T}, {c.RB}, v{T}")
        a(f"v_and_b32 v{T+1}, 3, v2")
        a(f"v_lshl_add_u32 v{T}, v{T+1}, 3, v{T}")
        a(f"s_mul_i32 s12, s25, {c.FN*32}")
        a(f"s_add_u32 s12, s12, {c.A_bytes}")
        a(f"v_add_u32 v{T}, s12, v{T}")
        a(f"v_and_b32 v{T+1}, 1, v3")
        a(f"v_lshlrev_b32 v{T+1}, 5, v{T+1}")
        a(f"s_mul_i32 s12, s25, {c.FN}")
        a("s_and_b32 s12, s12, 1")
        a("s_lshl_b32 s12, s12, 1")
        a("s_sub_u32 s12, 1, s12")
        a(f"v_mul_lo_u32 v{T+1}, v{T+1}, s12")
        a(f"v_add_u32 v{T+2}, v{T}, v{T+1}")
        a(f"v_sub_u32 v{T+3}, v{T}, v{T+1}")
        for s in range(c.NST):
            a(f"v_add_u32 v{c.vRd+4*s+2}, {s*c.stage}, v{T+2}")
            a(f"v_add_u32 v{c.vRd+4*s+3}, {s*c.stage}, v{T+3}")
    for i in range(c.FM * c.FN * 4):
        a(f"v_mov_b32 v{c.vAcc+i}, 0")
    if c.stats:
        for i in range(4 * c.FN):
            a(f"v_mov_b32 v{c.vCS+i}, 0")
        for i in range(4):
            a(f"v_mov_b32 v{c.vOne+i}, 0x3f803f80")

def step_prep(a, c):
    a("s_add_u32 s25, s19, s49")
    a("s_cmp_ge_u32 s25, s54")
    a("s_cselect_b32 s24, s51, 0")
    a("s_sub_u32 s25, s25, s24")
    if c.segA and ILV:
        a("s_lshl_b32 s25, s25, 2")
        a("s_add_u32 s25, s25, s46")
    if c.segA:
        a("s_lshr_b32 s24, s25, 5")
        a("s_and_b32 s20, s25, 31")
        a("s_lshl_b32 s20, s20, 7")
        a("s_cmp_eq_u32 s24, 0")
        a("s_cselect_b64 s[4:5], s[26:27], s[28:29]")
        a("s_cmp_eq_u32 s24, 2")
        a("s_cselect_b64 s[4:5], s[30:31], s[4:5]")
    else:
        a("s_lshl_b32 s20, s25, 7")
    if c.btn:
        a(f"s_mul_i32 s21, s25, {64*c.b_stride}")
    else:
        a("s_lshl_b32 s21, s25, 7")
    a("s_add_u32 s19, s19, 1")

def touch_setup(a, c, sArow, sBrow):
    T = c.vTmp
    a(f"v_and_b32 v{T}, 31, v1")
    a(f"s_mul_i32 s24, s16, {c.BM//4}")
    a(f"s_add_u32 s24, s24, s{sArow}")
    a(f"v_add_u32 v{T+1}, s24, v{T}")
    a(f"s_mov_b32 s25, {c.a_stride}")
    a(f"v_mul_lo_u32 v{c.vTch}, v{T+1}, s25")
    if not c.btn:
        a(f"s_mul_i32 s24, s16, {c.BN//4}")
        a(f"s_add_u32 s24, s24, s{sBrow}")
        a(f"v_add_u32 v{T+1}, s24, v{T}")
        a(f"s_mov_b32 s25, {c.b_stride}")
        a(f"v_mul_lo_u32 v{c.vTch+1}, v{T+1}, s25")
    else:
        a(f"v_and_b32 v{T}, 15, v1")
        a("s_lshl_b32 s24, s16, 4")
        a(f"v_add_u32 v{T}, s24, v{T}")
        a(f"v_mul_u32_u24 v{T}, {c.b_stride}, v{T}")
        a(f"s_lshl_b32 s25, s{sBrow}, 1")
        a(f"v_add_u32 v{T}, s25, v{T}")
        a(f"v_lshrrev_b32 v{T+1}, 4, v1")
        a(f"v_lshl_add_u32 v{c.vTch+1}, v{T+1}, 7, v{T}")
        a(f"v_add_u32 v{c.vTch+2}, {c.RB-4}, v{T}")

def touch_issue(a, c):
    step_prep(a, c)
    a(f"buffer_load_dword v{c.vTch+3}, v{c.vTch}, s[4:7], s20 offen")
    a(f"buffer_load_dword v{c.vTch+3}, v{c.vTch+1}, s[8:11], s21 offen")
    if c.btn:
        a(f"buffer_load_dword v{c.vTch+3}, v{c.vTch+2}, s[8:11], s21 offen")

def panel_prefetch(a, c, sArow):
    P = c.pfx
    D = c.vDum
    a("s_lshr_b32 s24, s48, 2")
    a("s_lshl_b32 s25, s16, 3")
    a("s_add_u32 s24, s24, s25")
    a(f"s_add_u32 s24, s24, s{sArow}")
    a("s_lshl_b32 s24, s24, 12")
    a(f"v_lshl_add_u32 v{c.vTch}, v1, 4, s24")
    a("s_lshr_b32 s20, s17, 3")
    a("s_sub_u32 s21, s18, 1")
    a("s_lshr_b32 s21, s21, 3")
    a.lab(f"{P}_pf")
    a("s_lshr_b32 s24, s20, 2")
    a("s_cmp_eq_u32 s24, 0")
    a("s_cselect_b64 s[4:5], s[26:27], s[28:29]")
    a("s_cmp_eq_u32 s24, 2")
    a("s_cselect_b64 s[4:5], s[30:31], s[4:5]")
    a("s_and_b32 s25, s20, 3")
    a("s_lshl_b32 s25, s25, 10")
    for r in range(8):
        a(f"buffer_load_dwordx4 v[{D}:{D+3}], v{c.vTch}, s[4:7], s25 offen")
        if r < 7:
            a("s_add_u32 s25, s25, 4096")
    a("s_add_u32 s20, s20, 1")
    a("s_cmp_le_u32 s20, s21")
    a(f"s_cbranch_scc1 {P}_pf")

SB = 32
def stats_setup(a, c):
    a("v_lshrrev_b32 v2, 1, v1")
    a("s_lshl_b32 s24, s16, 5")
    a("v_add_u32 v2, s24, v2")
    a("v_and_b32 v3, 1, v1")
    a("v_lshlrev_b32 v3, 6, v3")
    a("v_lshl_add_u32 v3, v2, 7, v3")
    a("v_lshrrev_b32 v2, 1, v2")
    for k in range(4):
        a(f"v_add_u32 v{SB+8}, {k}, v2")
        a(f"v_and_b32 v{SB+8}, 3, v{SB+8}")
        a(f"v_lshl_add_u32 v{SB+k}, v{SB+8}, 4, v3")
    for k in range(8, 12):
        a(f"v_mov_b32 v{SB+k}, 0")
    a(f"v_mov_b32 v{SB+14}, 0x3f803f80")
    a("s_mov_b32 s55, 0")

def stats_stage(a, c):
    Bf = 64
    for k in range(4):
        a(f"v_add_u32 v{Bf+48+k}, s55, v{SB+k}")
        a(f"ds_read_b128 v[{Bf+4*k}:{Bf+4*k+3}], v{Bf+48+k}")
    for k in range(16):
        if k % 4 == 0:
            a(f"s_waitcnt lgkmcnt({3-k//4})")
        a(f"v_dot2_f32_bf16 v{SB+8+(k&1)}, v{Bf+k}, v{SB+14}, v{SB+8+(k&1)}")
        a(f"v_dot2_f32_bf16 v{SB+10+(k&1)}, v{Bf+k}, v{Bf+k}, v{SB+10+(k&1)}")
    a(f"s_add_u32 s55, s55, {c.stage}")
    a(f"s_cmp_ge_u32 s55, {c.stage*c.NST}")
    a("s_cselect_b32 s55, 0, s55")

def stats_final(a, c):
    S, Q = SB + 8, SB + 10
    a("s_nop 3")
    a(f"v_add_f32 v{S}, v{S}, v{S+1}")
    a(f"v_add_f32 v{Q}, v{Q}, v{Q+1}")
    a("s_nop 1")
    a(f"v_add_f32_dpp v{S}, v{S}, v{S} quad_perm:[1,0,3,2] row_mask:0xf bank_mask:0xf")
    a(f"v_add_f32_dpp v{Q}, v{Q}, v{Q} quad_perm:[1,0,3,2] row_mask:0xf bank_mask:0xf")
    a(f"v_mul_f32 v{S}, 0x3b000000, v{S}")
    a(f"v_mul_f32 v{Q}, 0x3b000000, v{Q}")
    a(f"v_fma_f32 v{Q}, -v{S}, v{S}, v{Q}")
    a(f"v_max_f32 v{Q}, 0, v{Q}")
    round_bf16(a, S, S)
    round_bf16(a, Q, Q)
    a(f"v_add_f32 v{Q}, 0x3727c5ac, v{Q}")
    round_bf16(a, Q, Q)
    a(f"v_sqrt_f32 v{Q}, v{Q}")
    a("s_nop 0")
    round_bf16(a, Q, Q)
    a(f"v_rcp_f32 v{Q}, v{Q}")
    a("v_lshrrev_b32 v2, 1, v1")
    a("s_lshl_b32 s24, s16, 5")
    a("v_add_u32 v2, s24, v2")
    a("v_lshlrev_b32 v2, 2, v2")
    a(f"v_add_u32 v2, {c.L_M}, v2")
    a(f"ds_write_b32 v2, v{S}")
    a(f"ds_write_b32 v2, v{Q} offset:512")
    a("s_waitcnt lgkmcnt(0)")

def loader_issue(a, c):
    step_prep(a, c)
    a("s_add_u32 s24, s22, s52")
    for i in range(c.GA):
        if i % 4 == 0:
            a(f"s_add_u32 m0, s24, {(i//4)*4096}")
            a("s_nop 0")
        off = (i % 4) * 1024
        if not os.environ.get("NODMA"):
            a(f"buffer_load_dwordx4 v{c.vAoff+i}, s[4:7], s20 offen" + (f" offset:{off}" if off else "") + " lds")
    a("s_add_u32 s24, s23, s52")
    for i in range(c.GB):
        if i % 4 == 0:
            a(f"s_add_u32 m0, s24, {(i//4)*4096}")
            a("s_nop 0")
        off = (i % 4) * 1024
        if not os.environ.get("NODMA"):
            a(f"buffer_load_dwordx4 v{c.vBoff+i}, s[8:11], s21 offen" + (f" offset:{off}" if off else "") + " lds")
    a(f"s_add_u32 s52, s52, {c.stage}")
    a(f"s_cmp_ge_u32 s52, {c.stage*c.NST}")
    a("s_cselect_b32 s52, 0, s52")

def frag_reads(c, slot, kk):
    r = []
    if os.environ.get("NODSR"):
        return []
    for i in range(c.FM):
        d = c.vFA + (kk * c.FM + i) * 4
        r.append(f"ds_read_b128 v[{d}:{d+3}], v{c.vRd+4*slot+kk} offset:{i*2048}")
    for j in range(c.FN):
        d = c.vFB + (kk * c.FN + j) * 4
        if not c.btn:
            r.append(f"ds_read_b128 v[{d}:{d+3}], v{c.vRd+4*slot+2+kk} offset:{j*2048}")
        else:
            base = c.vRd + 4 * slot + 2 + (j & 1)
            o = j * 32 + kk * 32 * c.RB
            r.append(f"ds_read_b64_tr_b16 v[{d}:{d+1}], v{base} offset:{o}")
            r.append(f"ds_read_b64_tr_b16 v[{d+2}:{d+3}], v{base} offset:{o + 4*c.RB}")
    return r

def mfmas(c, kk):
    r = []
    if os.environ.get("NOMFMA"):
        return ["s_nop 0"] * (c.FM * c.FN)
    for i in range(c.FM):
        for j in range(c.FN):
            fa = c.vFA + (kk * c.FM + i) * 4
            fb = c.vFB + (kk * c.FN + j) * 4
            d = c.vAcc + (i * c.FN + j) * 4
            x, y = (fb, fa) if c.swap else (fa, fb)
            r.append(f"v_mfma_f32_16x16x32_bf16 v[{d}:{d+3}], v[{x}:{x+3}], v[{y}:{y+3}], v[{d}:{d+3}]")
    if c.stats:
        for j in range(c.FN):
            fb = c.vFB + (kk * c.FN + j) * 4
            d = c.vCS + 4 * j
            x, y = (fb, c.vOne) if c.swap else (c.vOne, fb)
            r.append(f"v_mfma_f32_16x16x32_bf16 v[{d}:{d+3}], v[{x}:{x+3}], v[{y}:{y+3}], v[{d}:{d+3}]")
    return r

def interleave(a, mf, reads):
    n = len(mf)
    slots = [[] for _ in range(n)]
    for i, r in enumerate(reads):
        slots[min(n - 1, i * (n - 3) // max(1, len(reads)))].append(r)
    for i in range(n):
        a(mf[i])
        for x in slots[i]:
            a(x)

def gemm(a, c, sArow, sBrow):
    P = c.pfx; N = c.NST
    a("s_mov_b32 s54, s18")
    a("s_cmp_lg_u32 s53, 0")
    a(f"s_cbranch_scc1 {P}_loader")
    if c.segA and os.environ.get("PF2"):
        panel_prefetch(a, c, sArow)
    compute_setup(a, c)
    a("s_barrier")
    for x in frag_reads(c, 0, 0):
        a(x)
    a("s_waitcnt lgkmcnt(0)")
    interleave(a, mfmas(c, 0), frag_reads(c, 0, 1))
    a("s_waitcnt lgkmcnt(0)")
    a("s_barrier")
    a("s_sub_u32 s18, s18, 1")
    a.lab(f"{P}_cloop")
    for s in range(N):
        nx = (s + 1) % N
        interleave(a, mfmas(c, 1), frag_reads(c, nx, 0))
        a("s_waitcnt lgkmcnt(0)")
        interleave(a, mfmas(c, 0), frag_reads(c, nx, 1))
        a("s_waitcnt lgkmcnt(0)")
        a("s_barrier")
        a("s_add_u32 s17, s17, 1")
        a("s_cmp_ge_u32 s17, s18")
        a(f"s_cbranch_scc1 {P}_cfin")
    a(f"s_branch {P}_cloop")
    a.lab(f"{P}_cfin")
    for x in mfmas(c, 1):
        a(x)
    if c.stats:
        a("s_barrier")
    a("s_nop 7")
    a("s_nop 7")
    a(f"s_branch {P}_cdone")
    a.lab(f"{P}_loader")
    loader_setup(a, c, sArow, sBrow)
    if c.stats:
        stats_setup(a, c)
    a("s_mov_b32 s52, 0")
    for s in range(N):
        loader_issue(a, c)
    a(f"s_waitcnt vmcnt({c.L*(N-1)})")
    a("s_barrier")
    if c.stats:
        stats_stage(a, c)
    a(f"s_waitcnt vmcnt({c.L*(N-2)})")
    a("s_barrier")
    a("s_sub_u32 s50, s18, 1")
    a.lab(f"{P}_lloop")
    a("s_cmp_ge_u32 s19, s18")
    a(f"s_cbranch_scc1 {P}_lnd")
    loader_issue(a, c)
    if c.stats:
        stats_stage(a, c)
    a(f"s_waitcnt vmcnt({c.L*(N-2)})")
    a(f"s_branch {P}_lbar")
    a.lab(f"{P}_lnd")
    if c.stats:
        stats_stage(a, c)
    a("s_waitcnt vmcnt(0)")
    a.lab(f"{P}_lbar")
    a("s_barrier")
    a("s_add_u32 s17, s17, 1")
    a("s_cmp_lt_u32 s17, s50")
    a(f"s_cbranch_scc1 {P}_lloop")
    if c.stats:
        stats_final(a, c)
        a("s_barrier")
    if P == "k1d" and not os.environ.get("NOPF"):
        a("s_lshl_b32 s24, s44, 3")
        a("s_add_u32 s24, s24, s45")
        a("s_cmp_lt_u32 s24, 64")
        a("s_cselect_b64 s[20:21], s[26:27], s[28:29]")
        srd(a, 12, 20, 21, 2048*4096)
        a("s_and_b32 s24, s24, 63")
        a("s_lshl_b32 s24, s24, 17")
        a("s_lshl_b32 s25, s16, 15")
        a("s_add_u32 s24, s24, s25")
        a(f"v_lshlrev_b32 v{c.vTch}, 4, v1")
        for r in range(32):
            a(f"buffer_load_dwordx4 v[{c.vDum}:{c.vDum+3}], v{c.vTch}, s[12:15], s24 offen" + (f" offset:{(r%4)*1024}" if r % 4 else ""))
            if r % 4 == 3 and r < 31:
                a("s_add_u32 s24, s24, 4096")
    a(f"s_branch {P}_ldone")

def role_setup(a):
    a("v_and_b32 v1, 63, v0")
    a("v_lshrrev_b32 v2, 6, v0")
    a("s_nop 0")
    a("v_readfirstlane_b32 s16, v2")
    a("s_lshr_b32 s53, s16, 2")
    a("s_and_b32 s16, s16, 3")

def store_phase(a, vT, cpr, nrows, lds_stride, g_stride, srdreg, soff, flags=""):
    nit = nrows * cpr // 512
    assert nit * 512 == nrows * cpr
    regs = []
    for i in range(nit):
        a(f"v_add_u32 v{vT}, {512*i}, v0")
        if cpr in (16, 32):
            sh = 4 if cpr == 16 else 5
            a(f"v_lshrrev_b32 v{vT+1}, {sh}, v{vT}")
            a(f"v_and_b32 v{vT+2}, {cpr-1}, v{vT}")
        else:
            assert cpr == 28
            a(f"v_mul_u32_u24 v{vT+1}, 2341, v{vT}")
            a(f"v_lshrrev_b32 v{vT+1}, 16, v{vT+1}")
            a(f"v_mul_u32_u24 v{vT+2}, 28, v{vT+1}")
            a(f"v_sub_u32 v{vT+2}, v{vT}, v{vT+2}")
        a(f"v_lshlrev_b32 v{vT+2}, 4, v{vT+2}")
        a(f"v_mul_u32_u24 v{vT+3}, {lds_stride}, v{vT+1}")
        a(f"v_add_u32 v{vT+3}, v{vT+3}, v{vT+2}")
        d = 8 + 4 * i
        a(f"ds_read_b128 v[{d}:{d+3}], v{vT+3}")
        a(f"s_mov_b32 s24, {g_stride}")
        a(f"v_mul_lo_u32 v{vT+1}, v{vT+1}, s24")
        a(f"v_add_u32 v{48+i}, v{vT+1}, v{vT+2}")
    for i in range(nit):
        d = 8 + 4 * i
        a(f"s_waitcnt lgkmcnt({nit-1-i})")
        a(f"buffer_store_dwordx4 v[{d}:{d+3}], v{48+i}, s[{srdreg}:{srdreg+3}], s{soff} offen" + flags)

def gen_k1(a, name):
    cd = GemmCfg("k1d", 128, 128, 4, btn=False, a_stride=1024, b_stride=1024, swap=False, stats=True)
    cm = GemmCfg("k1m", 128, 224, 3, btn=True, a_stride=1024, b_stride=3584, swap=True, stats=True)
    kernel_header(a, name)
    a("s_cmp_ge_u32 s2, 256")
    a("s_cbranch_scc1 L_k1_end")
    rt_start(a)
    stamp(a, 0)
    a(f"s_load_dwordx2 s[32:33], s[0:1], {KA_WS}")
    a(f"s_load_dwordx2 s[34:35], s[0:1], {KA_DR}")
    a(f"s_load_dwordx2 s[36:37], s[0:1], {KA_DI}")
    a(f"s_load_dwordx2 s[38:39], s[0:1], {KA_W1}")
    a(f"s_load_dwordx2 s[40:41], s[0:1], {KA_B1}")
    a(f"s_load_dwordx2 s[42:43], s[0:1], {KA_W2}")
    a(f"s_load_dwordx2 s[26:27], s[0:1], {KA_CR}")
    a(f"s_load_dwordx2 s[28:29], s[0:1], {KA_CI}")
    a(f"s_load_dwordx2 s[30:31], s[0:1], {KA_X}")
    role_setup(a)
    a("s_lshr_b32 s44, s2, 4")
    a("s_and_b32 s45, s2, 15")
    a("s_lshl_b32 s46, s44, 7")
    a("s_mov_b32 s17, 0")
    a("s_mov_b32 s18, 8")
    a("s_mov_b32 s19, 0")
    a("s_and_b32 s49, s44, 7")
    a("s_mov_b32 s51, 8")
    a("s_waitcnt lgkmcnt(0)")
    srd(a, 4, 30, 31, 2048*512*2)
    a("s_cmp_ge_u32 s45, 8")
    a("s_cbranch_scc1 L_k1_mlp")
    c = cd; T = c.vTmp
    a("s_cmp_lt_u32 s45, 4")
    a("s_cselect_b64 s[24:25], s[34:35], s[36:37]")
    srd(a, 8, 24, 25, 512*512*2)
    a("s_and_b32 s47, s45, 3")
    a("s_lshl_b32 s47, s47, 7")
    gemm(a, c, 46, 47)
    a.lab("k1d_cdone")
    LS = 272
    a("s_cmp_lt_u32 s45, 4")
    a("s_mov_b32 s26, 1.0")
    a("s_cselect_b32 s26, s26, -1.0")
    a("s_lshr_b32 s27, s16, 1")
    a("s_and_b32 s28, s16, 1")
    a(f"s_mul_i32 s29, s28, {c.BN//c.WN*LS}")
    a(f"s_mul_i32 s30, s27, {c.BM//c.WM*2}")
    a("s_add_u32 s29, s29, s30")
    a("v_and_b32 v2, 15, v1")
    a("v_lshrrev_b32 v3, 4, v1")
    Mr = c.vFA; Rr = c.vFA + 16; Cs = c.vFB
    a(f"s_mul_i32 s30, s27, {c.BM//c.WM*4}")
    a(f"s_add_u32 s30, s30, {c.L_M}")
    a(f"v_lshlrev_b32 v{T}, 4, v3")
    a(f"v_add_u32 v{T}, s30, v{T}")
    for i in range(c.FM):
        a(f"ds_read_b128 v[{Mr+4*i}:{Mr+4*i+3}], v{T} offset:{i*64}")
        a(f"ds_read_b128 v[{Rr+4*i}:{Rr+4*i+3}], v{T} offset:{512 + i*64}")
    a(f"v_mul_u32_u24 v2, {LS}, v2")
    a("v_lshl_add_u32 v2, v3, 3, v2")
    a("v_add_u32 v2, s29, v2")
    a("s_waitcnt lgkmcnt(0)")
    for k in range(c.FM * 4):
        a(f"v_mul_f32 v{Rr+k}, s26, v{Rr+k}")
    for j in range(c.FN):
        for i in range(c.FM):
            d = c.vAcc + (i * c.FN + j) * 4
            for r in range(4):
                a(f"v_fma_f32 v{T+r}, -v{Mr+4*i+r}, v{c.vCS+4*j}, v{d+r}")
                a(f"v_mul_f32 v{T+r}, v{T+r}, v{Rr+4*i+r}")
            a(f"v_cvt_pk_bf16_f32 v{T+4+2*(i&1)}, v{T}, v{T+1}")
            a(f"v_cvt_pk_bf16_f32 v{T+5+2*(i&1)}, v{T+2}, v{T+3}")
            a(f"ds_write_b64 v2, v[{T+4+2*(i&1)}:{T+5+2*(i&1)}] offset:{j*16*LS + i*32}")
    a("s_waitcnt lgkmcnt(0)")
    a.lab("k1d_ldone")
    a("s_barrier")
    srd_off(a, 12, 32, 33, WS_BT, 512*BT_STRIDE)
    a("s_cmp_lt_u32 s45, 4")
    a("s_cselect_b32 s24, 0, 4096")
    a(f"s_mul_i32 s25, s47, {BT_STRIDE}")
    a("s_add_u32 s25, s25, s24")
    a("s_lshl_b32 s24, s46, 1")
    a("s_add_u32 s31, s25, s24")
    store_phase(a, 4, 16, 128, LS, BT_STRIDE, 12, 31)
    a("s_cmp_lg_u32 s53, 0")
    a("s_cbranch_scc1 L_k1_end")
    a("s_lshl_b32 s24, s44, 3")
    a("s_add_u32 s24, s24, s45")
    a("s_cmp_ge_u32 s24, 112")
    a("s_cbranch_scc1 L_k1_end")
    a("s_lshr_b32 s25, s24, 2")
    a("s_and_b32 s26, s24, 3")
    srd(a, 8, 42, 43, 1792*512*2)
    W2L = 65536
    a("s_lshl_b32 s27, s16, 8")
    a(f"s_mul_i32 s28, s25, {64*1024}")
    a("s_lshl_b32 s29, s26, 8")
    a("s_add_u32 s28, s28, s29")
    for i in range(4):
        a(f"v_add_u32 v{T}, s27, v1")
        if i:
            a(f"v_add_u32 v{T}, {i*64}, v{T}")
        a(f"v_lshrrev_b32 v{T+1}, 4, v{T}")
        a(f"v_and_b32 v{T+2}, 15, v{T}")
        a(f"v_and_b32 v{T+3}, 3, v{T+1}")
        a(f"v_lshrrev_b32 v{T+4}, 1, v{T+1}")
        a(f"v_and_b32 v{T+4}, 4, v{T+4}")
        a(f"v_or_b32 v{T+3}, v{T+3}, v{T+4}")
        a(f"v_lshlrev_b32 v{T+3}, 1, v{T+3}")
        a(f"v_xor_b32 v{T+2}, v{T+2}, v{T+3}")
        a(f"v_lshlrev_b32 v{T+2}, 4, v{T+2}")
        a(f"v_lshl_add_u32 v{T+8+i}, v{T+1}, 10, v{T+2}")
        if i:
            a(f"v_subrev_u32 v{T+8+i}, {i*1024}, v{T+8+i}")
    a("s_lshl_b32 s29, s16, 12")
    a(f"s_add_u32 m0, s29, {W2L}")
    a("s_nop 0")
    for i in range(4):
        a(f"buffer_load_dwordx4 v{T+8+i}, s[8:11], s28 offen" + (f" offset:{i*1024}" if i else "") + " lds")
    a("s_waitcnt vmcnt(0)")
    a("s_barrier")
    a("v_and_b32 v2, 15, v1")
    a("v_lshrrev_b32 v3, 4, v1")
    a(f"v_lshrrev_b32 v{T}, 2, v2")
    a(f"v_lshl_add_u32 v{T+1}, v3, 3, v{T}")
    a(f"v_lshlrev_b32 v{T+1}, 8, v{T+1}")
    a(f"v_and_b32 v{T+2}, 1, v3")
    a(f"v_lshl_or_b32 v{T+2}, v{T+2}, 2, v{T}")
    a(f"v_lshl_add_u32 v{T+1}, v{T+2}, 5, v{T+1}")
    a(f"v_and_b32 v{T+2}, 3, v2")
    a(f"v_lshl_add_u32 v{T+1}, v{T+2}, 3, v{T+1}")
    a("s_lshl_b32 s29, s16, 6")
    a(f"v_xor_b32 v{T+2}, s29, v{T+1}")
    a(f"v_xor_b32 v{T+3}, 32, v{T+2}")
    a(f"v_add_u32 v{T+2}, {W2L}, v{T+2}")
    a(f"v_add_u32 v{T+3}, {W2L}, v{T+3}")
    F = c.vFA
    for fi in range(2):
        for kk in range(2):
            d = F + (fi * 2 + kk) * 4
            a(f"ds_read_b64_tr_b16 v[{d}:{d+1}], v{T+2+fi} offset:{kk*32*256}")
            a(f"ds_read_b64_tr_b16 v[{d+2}:{d+3}], v{T+2+fi} offset:{kk*32*256 + 4*256}")
    a("s_lshl_b32 s29, s26, 7")
    a("s_lshl_b32 s30, s16, 5")
    a("s_add_u32 s29, s29, s30")
    a(f"v_add_u32 v{T}, s29, v2")
    a(f"s_mov_b32 s31, {BT_STRIDE}")
    a(f"v_mul_lo_u32 v{T}, v{T}, s31")
    a(f"v_lshl_add_u32 v{T}, v3, 4, v{T}")
    a("s_lshl_b32 s30, s25, 7")
    a(f"s_add_u32 s30, s30, {4096*2}")
    a(f"v_add_u32 v{T}, s30, v{T}")
    a(f"v_add_u32 v{T+1}, {16*BT_STRIDE}, v{T}")
    a("s_waitcnt lgkmcnt(0)")
    for fi in range(2):
        for kk in range(2):
            d = F + (fi * 2 + kk) * 4
            a(f"buffer_store_dwordx4 v[{d}:{d+3}], v{T+fi}, s[12:15], 0 offen offset:{kk*64}")
    a("s_branch L_k1_end")
    a.lab("L_k1_mlp")
    c = cm; T = c.vTmp
    srd(a, 8, 38, 39, 512*1792*2)
    a("s_sub_u32 s47, s45, 8")
    a("s_mul_i32 s47, s47, 224")
    stamp(a, 1)
    gemm(a, c, 46, 47)
    a.lab("k1m_cdone")
    stamp(a, 2)
    LS = 464
    srd(a, 8, 40, 41, 1792*2)
    a("s_lshr_b32 s27, s16, 1")
    a("s_and_b32 s28, s16, 1")
    a(f"s_mul_i32 s29, s28, {c.BN//c.WN*2}")
    a(f"s_mul_i32 s30, s27, {c.BM//c.WM*LS}")
    a("v_and_b32 v2, 15, v1")
    a("v_lshrrev_b32 v3, 4, v1")
    a("v_lshlrev_b32 v3, 3, v3")
    a("v_add_u32 v3, s29, v3")
    a(f"v_mul_u32_u24 v2, {LS}, v2")
    a("v_add3_u32 v2, v2, v3, s30")
    a("s_lshl_b32 s31, s47, 1")
    a("v_add_u32 v3, s31, v3")
    Bq = c.vFA
    Mr = c.vFA + 16; Rr = c.vFA + 20
    Bf = c.vFB
    Cs = c.vCS
    for j in range(c.FN):
        a(f"buffer_load_dwordx2 v[{Bq+2*j}:{Bq+2*j+1}], v3, s[8:11], 0 offen offset:{j*32}")
    a(f"v_and_b32 v{T}, 15, v1")
    a(f"s_mul_i32 s30, s27, {c.BM//c.WM*4}")
    a(f"s_add_u32 s30, s30, {c.L_M}")
    a(f"v_lshlrev_b32 v{T}, 2, v{T}")
    a(f"v_add_u32 v{T}, s30, v{T}")
    for i in range(c.FM):
        a(f"ds_read_b32 v{Mr+i}, v{T} offset:{i*64}")
        a(f"ds_read_b32 v{Rr+i}, v{T} offset:{512 + i*64}")
    a("s_waitcnt vmcnt(0) lgkmcnt(0)")
    for j in range(c.FN):
        for h in range(2):
            a(f"v_lshlrev_b32 v{Bf+4*j+2*h}, 16, v{Bq+2*j+h}")
            a(f"v_and_b32 v{Bf+4*j+2*h+1}, 0xffff0000, v{Bq+2*j+h}")
    for i in range(c.FM):
        for j in range(c.FN):
            d = c.vAcc + (i * c.FN + j) * 4
            o = T + 4 + 2 * (j & 1)
            for r in range(4):
                a(f"v_fma_f32 v{T+r}, -v{Mr+i}, v{Cs+4*j+r}, v{d+r}")
            for r in range(4):
                a(f"v_fma_f32 v{T+r}, v{T+r}, v{Rr+i}, v{Bf+4*j+r}")
            for r in range(4):
                a(f"v_max_f32 v{T+r}, 0, v{T+r}")
            for r in range(4):
                a(f"v_mul_f32 v{T+r}, v{T+r}, v{T+r}")
            a(f"v_cvt_pk_bf16_f32 v{o}, v{T}, v{T+1}")
            a(f"v_cvt_pk_bf16_f32 v{o+1}, v{T+2}, v{T+3}")
            a(f"ds_write_b64 v2, v[{o}:{o+1}] offset:{i*16*LS + j*32}")
    a("s_waitcnt lgkmcnt(0)")
    a.lab("k1m_ldone")
    a("s_barrier")
    stamp(a, 3)
    srd_off(a, 12, 32, 33, WS_H, 2048*4096)
    a("s_lshl_b32 s24, s46, 12")
    a("s_lshl_b32 s25, s47, 1")
    a("s_add_u32 s31, s24, s25")
    store_phase(a, 4, 28, 128, LS, 4096, 12, 31)
    stamp(a, 4)
    if STAMP:
        a("s_waitcnt vmcnt(0)")
    stamp(a, 5)
    stamp_flush(a, 6, 8)
    a.lab("L_k1_end")
    if os.environ.get("RT"):
        a("s_cmp_ge_u32 s2, 256")
        a("s_cbranch_scc1 L_k1_end2")
        rt_end(a, 0)
        a.lab("L_k1_end2")
    a("s_endpgm")
    nv = max(cd.nvgpr, cm.nvgpr)
    return kernel_desc(name, nv, 96), max(cd.lds(), cm.lds())

def gen_k2(a, name):
    c = GemmCfg("k2", 128, 128, 4, btn=False, a_stride=4096, b_stride=BT_STRIDE, swap=True, segA=True)
    T = c.vTmp
    kernel_header(a, name)
    a("s_cmp_ge_u32 s2, 256")
    a("s_cbranch_scc1 L_k2_end")
    rt_start(a)
    stamp(a, 0)
    a(f"s_load_dwordx2 s[26:27], s[0:1], {KA_CR}")
    a(f"s_load_dwordx2 s[28:29], s[0:1], {KA_CI}")
    a(f"s_load_dwordx2 s[32:33], s[0:1], {KA_WS}")
    a(f"s_load_dwordx2 s[34:35], s[0:1], {KA_DBG}")
    a(f"s_load_dwordx2 s[40:41], s[0:1], {KA_X}")
    a(f"s_load_dwordx2 s[42:43], s[0:1], {KA_B2}")
    a(f"s_load_dwordx2 s[56:57], s[0:1], {KA_OUT}")
    role_setup(a)
    a("s_and_b32 s44, s2, 7")
    a("s_lshr_b32 s45, s2, 3")
    a("s_lshr_b32 s46, s44, 1")
    a("s_and_b32 s47, s44, 1")
    a("s_lshl_b32 s47, s47, 3")
    a("s_lshr_b32 s48, s45, 2")
    a("s_add_u32 s47, s47, s48")
    a("s_and_b32 s48, s45, 3")
    a("s_lshl_b32 s47, s47, 7")
    a("s_lshl_b32 s48, s48, 7")
    if ILV:
        a("s_mov_b32 s17, 0")
    else:
        a("s_mul_i32 s17, s46, 23")
    a("s_add_u32 s18, s17, 23")
    a("s_mov_b32 s19, s17")
    a("s_lshr_b32 s49, s45, 2")
    a(f"s_mul_i32 s49, s49, {ROT2}")
    a("s_mov_b32 s51, 23")
    a("s_waitcnt lgkmcnt(0)")
    a(f"s_add_u32 s30, s32, {WS_H}")
    a("s_addc_u32 s31, s33, 0")
    a("s_and_b32 s27, s27, 0xffff")
    a("s_and_b32 s29, s29, 0xffff")
    a("s_and_b32 s31, s31, 0xffff")
    srd(a, 4, 26, 27, 2048*4096)
    srd_off(a, 8, 32, 33, WS_BT, 512*BT_STRIDE)
    stamp(a, 1)
    gemm(a, c, 47, 48)
    a.lab("k2_cdone")
    stamp(a, 2)
    LS = 528
    a("s_lshr_b32 s27, s16, 1")
    a("s_and_b32 s28, s16, 1")
    a(f"s_mul_i32 s29, s28, {c.BN//c.WN*4}")
    a(f"s_mul_i32 s30, s27, {c.BM//c.WM*LS}")
    a("s_add_u32 s29, s29, s30")
    a("v_and_b32 v2, 15, v1")
    a("v_lshrrev_b32 v3, 4, v1")
    a(f"v_mul_u32_u24 v2, {LS}, v2")
    a("v_lshl_add_u32 v2, v3, 4, v2")
    a("v_add_u32 v2, s29, v2")
    for i in range(c.FM):
        for j in range(c.FN):
            d = c.vAcc + (i * c.FN + j) * 4
            a(f"ds_write_b128 v2, v[{d}:{d+3}] offset:{i*16*LS + j*64}")
    a("s_waitcnt lgkmcnt(0)")
    a.lab("k2_ldone")
    TK = 128 * LS
    srd(a, 8, 34, 35, 256)
    a("s_lshr_b32 s24, s47, 5")
    a("s_lshr_b32 s25, s48, 7")
    a("s_add_u32 s24, s24, s25")
    a("s_lshl_b32 s36, s24, 2")
    a("v_cmp_eq_u32 vcc, 0, v0")
    a("s_and_saveexec_b64 s[24:25], vcc")
    a("s_cbranch_execz k2_tk1")
    a("v_mov_b32 v4, 1")
    a("v_mov_b32 v5, s36")
    a("buffer_atomic_add v4, v5, s[8:11], 0 offen sc0 sc1")
    a("s_waitcnt vmcnt(0)")
    a(f"v_mov_b32 v5, {TK}")
    a("ds_write_b32 v5, v4")
    a("s_waitcnt lgkmcnt(0)")
    a.lab("k2_tk1")
    a("s_mov_b64 exec, s[24:25]")
    a("s_barrier")
    stamp(a, 3)
    a(f"v_mov_b32 v5, {TK}")
    a("ds_read_b32 v4, v5")
    a("s_waitcnt lgkmcnt(0)")
    a("v_and_b32 v4, 0xffff, v4")
    a("s_nop 0")
    a("v_readfirstlane_b32 s37, v4")
    srd_off(a, 12, 32, 33, WS_P, 3*2048*512*4)
    a("s_lshl_b32 s24, s47, 11")
    a("s_lshl_b32 s25, s48, 2")
    a("s_add_u32 s38, s24, s25")
    a("s_cmp_eq_u32 s37, 3")
    a("s_cbranch_scc1 k2_last")
    a("s_lshl_b32 s31, s37, 22")
    a("s_add_u32 s31, s31, s38")
    store_phase(a, 4, 32, 128, LS, 2048, 12, 31, " sc0 sc1")
    a("s_waitcnt vmcnt(0)")
    a("s_barrier")
    a("v_cmp_eq_u32 vcc, 0, v0")
    a("s_and_saveexec_b64 s[24:25], vcc")
    a("s_cbranch_execz L_k2_end")
    a("v_mov_b32 v4, 0x10000")
    a("v_mov_b32 v5, s36")
    a("buffer_atomic_add v4, v5, s[8:11], 0 offen sc1")
    a("s_branch L_k2_end")
    a.lab("k2_last")
    a("v_cmp_eq_u32 vcc, 0, v0")
    a("s_and_saveexec_b64 s[24:25], vcc")
    a("s_cbranch_execz k2_pl2")
    a("v_mov_b32 v5, s36")
    a.lab("k2_poll")
    a("buffer_load_dword v4, v5, s[8:11], 0 offen sc0 sc1")
    a("s_waitcnt vmcnt(0)")
    a("v_lshrrev_b32 v4, 16, v4")
    a("s_nop 0")
    a("v_readfirstlane_b32 s39, v4")
    a("s_cmp_ge_u32 s39, 3")
    a("s_cbranch_scc1 k2_pl2")
    a("s_sleep 2")
    a("s_branch k2_poll")
    a.lab("k2_pl2")
    a("s_mov_b64 exec, s[24:25]")
    a("s_barrier")
    srd(a, 4, 40, 41, 2048*512*2)
    srd(a, 8, 42, 43, 512*2)
    srd(a, 20, 56, 57, 2048*512*2)
    a("s_lshr_b32 s39, s38, 1")
    a(f"s_add_u32 s24, s38, {1 << 22}")
    a(f"s_add_u32 s25, s38, {2 << 22}")
    a("v_and_b32 v4, 31, v0")
    a("v_lshrrev_b32 v5, 5, v0")
    a("v_lshlrev_b32 v6, 3, v4")
    a("s_lshl_b32 s30, s48, 1")
    a("v_add_u32 v6, s30, v6")
    a("buffer_load_dwordx2 v[8:9], v6, s[8:11], 0 offen")
    a(f"v_mul_u32_u24 v6, {LS}, v5")
    a("v_lshl_add_u32 v6, v4, 4, v6")
    a("v_lshlrev_b32 v7, 11, v5")
    a("v_lshl_add_u32 v7, v4, 4, v7")
    a("v_lshrrev_b32 v10, 1, v7")
    for half in range(2):
        for i in range(4):
            it = half * 4 + i
            b = 16 + i * 20
            a(f"v_add_u32 v11, {it*16*2048}, v7")
            a(f"buffer_load_dwordx4 v[{b}:{b+3}], v11, s[12:15], s38 offen sc0 sc1")
            a(f"buffer_load_dwordx4 v[{b+4}:{b+7}], v11, s[12:15], s24 offen sc0 sc1")
            a(f"buffer_load_dwordx4 v[{b+8}:{b+11}], v11, s[12:15], s25 offen sc0 sc1")
            a(f"v_add_u32 v{b+18}, {it*16*1024}, v10")
            a(f"buffer_load_dwordx2 v[{b+16}:{b+17}], v{b+18}, s[4:7], s39 offen")
            a(f"ds_read_b128 v[{b+12}:{b+15}], v6 offset:{it*16*LS}")
        a("s_waitcnt vmcnt(0) lgkmcnt(0)")
        if half == 0:
            a("v_lshlrev_b32 v12, 16, v8")
            a("v_and_b32 v13, 0xffff0000, v8")
            a("v_lshlrev_b32 v14, 16, v9")
            a("v_and_b32 v15, 0xffff0000, v9")
        for i in range(4):
            b = 16 + i * 20
            for e in range(4):
                a(f"v_add_f32 v{b+e}, v{b+e}, v{b+4+e}")
                a(f"v_add_f32 v{b+8+e}, v{b+8+e}, v{b+12+e}")
            for e in range(4):
                a(f"v_add_f32 v{b+e}, v{b+e}, v{b+8+e}")
                a(f"v_add_f32 v{b+e}, v{b+e}, v{12+e}")
            a(f"v_lshlrev_b32 v{b+4}, 16, v{b+16}")
            a(f"v_and_b32 v{b+5}, 0xffff0000, v{b+16}")
            a(f"v_lshlrev_b32 v{b+6}, 16, v{b+17}")
            a(f"v_and_b32 v{b+7}, 0xffff0000, v{b+17}")
            for e in range(4):
                a(f"v_add_f32 v{b+e}, v{b+e}, v{b+4+e}")
            a(f"v_cvt_pk_bf16_f32 v{b+8}, v{b}, v{b+1}")
            a(f"v_cvt_pk_bf16_f32 v{b+9}, v{b+2}, v{b+3}")
            a(f"buffer_store_dwordx2 v[{b+8}:{b+9}], v{b+18}, s[20:23], s39 offen")
        a("s_nop 1")
    a.lab("L_k2_end")
    if os.environ.get("RT"):
        a("s_cmp_ge_u32 s2, 256")
        a("s_cbranch_scc1 L_k2_end2")
        rt_end(a, 1)
        a.lab("L_k2_end2")
    a("s_endpgm")
    return kernel_desc(name, c.nvgpr, 96), c.lds()

def gen_k3(a, name):
    kernel_header(a, name)
    a("s_cmp_ge_u32 s2, 512")
    a("s_cbranch_scc1 L_k3_end")
    a(f"s_load_dwordx2 s[4:5], s[0:1], {KA_X}")
    a(f"s_load_dwordx2 s[6:7], s[0:1], {KA_B2}")
    a(f"s_load_dwordx2 s[24:25], s[0:1], {KA_OUT}")
    a(f"s_load_dwordx2 s[26:27], s[0:1], {KA_WS}")
    a("s_lshl_b32 s3, s2, 8")
    a("v_add_u32 v1, s3, v0")
    a("v_lshlrev_b32 v2, 4, v1")
    a("v_lshlrev_b32 v3, 5, v1")
    a("v_and_b32 v4, 63, v1")
    a("v_lshlrev_b32 v4, 4, v4")
    a("s_waitcnt lgkmcnt(0)")
    srd(a, 8, 4, 5, 2048*512*2)
    srd(a, 12, 6, 7, 512*2)
    srd(a, 16, 24, 25, 2048*512*2)
    srd_off(a, 20, 26, 27, WS_P, NSPLIT*2048*512*4)
    a("buffer_load_dwordx4 v[8:11], v2, s[8:11], 0 offen")
    a("buffer_load_dwordx4 v[12:15], v4, s[12:15], 0 offen")
    for s in range(NSPLIT):
        a(f"s_mov_b32 s28, {s << 22}")
        a(f"buffer_load_dwordx4 v[{16+8*s}:{19+8*s}], v3, s[20:23], s28 offen")
        a(f"buffer_load_dwordx4 v[{20+8*s}:{23+8*s}], v3, s[20:23], s28 offen offset:16")
    a("s_waitcnt vmcnt(0)")
    for s in range(1, NSPLIT):
        for e in range(8):
            a(f"v_add_f32 v{16+e}, v{16+e}, v{16+8*s+e}")
    for i in range(4):
        a(f"v_lshlrev_b32 v5, 16, v{8+i}")
        a(f"v_and_b32 v6, 0xffff0000, v{8+i}")
        a(f"v_add_f32 v{16+2*i}, v{16+2*i}, v5")
        a(f"v_add_f32 v{17+2*i}, v{17+2*i}, v6")
        a(f"v_lshlrev_b32 v5, 16, v{12+i}")
        a(f"v_and_b32 v6, 0xffff0000, v{12+i}")
        a(f"v_add_f32 v{16+2*i}, v{16+2*i}, v5")
        a(f"v_add_f32 v{17+2*i}, v{17+2*i}, v6")
    for i in range(4):
        a(f"v_cvt_pk_bf16_f32 v{8+i}, v{16+2*i}, v{17+2*i}")
    a("buffer_store_dwordx4 v[8:11], v2, s[16:19], 0 offen")
    a.lab("L_k3_end")
    a("s_endpgm")
    return kernel_desc(name, 16 + 8 * NSPLIT, 32)

def main():
    hdr = open("cdna_kernels/" + KN + ".s.ref").read().split("; Override launch geometry")[0]
    descs = []
    body = Asm()
    body.raw('.amdgcn_target "amdgcn-amd-amdhsa--gfx950"')
    body.raw(".text")
    d, lds1 = gen_k1(body, "gemm1_kernel"); descs.append(d)
    d, lds2 = gen_k2(body, "gemm2_kernel"); descs.append(d)
    out = hdr
    out += f"; @launch kernel=gemm1_kernel grid=(256,1,1) block=(512,1,1) lds={lds1}\n"
    out += f"; @launch kernel=gemm2_kernel grid=(256,1,1) block=(512,1,1) lds={lds2}\n"
    out += body.text()
    out += '.section .rodata,"a"\n' + "".join(descs)
    dst = sys.argv[1] if len(sys.argv) > 1 else "cdna_kernels/" + KN + ".s"
    open(dst, "w").write(out)

main()
```

```python
import sys, os

KN = "parallel_sum__spectral_fnet__dense_activation_squared_relu__prompt"
KA_X, KA_CR, KA_CI, KA_DR, KA_DI, KA_BX, KA_W1, KA_B1, KA_W2, KA_B2, KA_OUT, KA_DBG, KA_WS = [8*i for i in range(13)]
WS_XN = 0
WS_BT = 2 << 20
BT_STRIDE = 5888 * 2
WS_H = 8 << 20
WS_P = 16 << 20
NSPLIT = 4
ROT2 = int(os.environ.get('ROT2', '2'))
STAMP = os.environ.get("STAMP")
ILV = int(os.environ.get('ILV', '1'))
PFW = int(os.environ.get('PFW', '0'))
ROTN = int(os.environ.get('ROTN', '0'))

class Asm:
    def __init__(s):
        s.l = []
    def __call__(s, t):
        s.l.append("    " + t)
    def lab(s, t):
        s.l.append(t + ":")
    def raw(s, t):
        s.l.append(t)
    def text(s):
        return "\n".join(s.l) + "\n"

def srd(a, d, lo, hi, nbytes):
    a(f"s_mov_b32 s{d}, s{lo}")
    a(f"s_and_b32 s{d+1}, s{hi}, 0xffff")
    a(f"s_mov_b32 s{d+2}, {nbytes}")
    a(f"s_mov_b32 s{d+3}, 0x00020000")

def srd_off(a, d, lo, hi, off, nbytes):
    a(f"s_add_u32 s{d}, s{lo}, {off}")
    a(f"s_addc_u32 s{d+1}, s{hi}, 0")
    a(f"s_and_b32 s{d+1}, s{d+1}, 0xffff")
    a(f"s_mov_b32 s{d+2}, {nbytes}")
    a(f"s_mov_b32 s{d+3}, 0x00020000")

def kernel_header(a, name):
    a.raw(f".globl {name}")
    a.raw(".p2align 8")
    a.raw(f".type {name},@function")
    a.lab(name)

def kernel_desc(name, vgpr, sgpr=102, accum=None):
    if accum is None:
        accum = (vgpr + 3) // 4 * 4
    return f""".p2align 6
.amdhsa_kernel {name}
  .amdhsa_next_free_vgpr {vgpr}
  .amdhsa_next_free_sgpr {sgpr}
  .amdhsa_accum_offset {accum}
  .amdhsa_group_segment_fixed_size 0
  .amdhsa_kernarg_size 104
  .amdhsa_user_sgpr_count 2
  .amdhsa_user_sgpr_kernarg_segment_ptr 1
  .amdhsa_system_sgpr_workgroup_id_x 1
.end_amdhsa_kernel
"""

def stamp(a, idx):
    if not STAMP: return
    a(f"s_memtime s[{60+2*idx}:{61+2*idx}]")
def rt_start(a):
    if not os.environ.get("RT"): return
    a("s_memrealtime s[76:77]")
def rt_end(a, kidx):
    if not os.environ.get("RT"): return
    k = rt_end.n; rt_end.n += 1
    a("s_waitcnt vmcnt(0) lgkmcnt(0)")
    a("s_memrealtime s[78:79]")
    a(f"s_load_dwordx2 s[56:57], s[0:1], {KA_WS}")
    a("s_waitcnt lgkmcnt(0)")
    srd_off(a, 52, 56, 57, (64 << 20) + kidx * 65536, 65536)
    a("v_cmp_eq_u32 vcc, 0, v0")
    a("s_and_saveexec_b64 s[58:59], vcc")
    a(f"s_cbranch_execz L_rt_skip{k}")
    a("s_lshl_b32 s56, s2, 4")
    a("v_mov_b32 v2, s56")
    a("v_mov_b32 v4, s76")
    a("v_mov_b32 v5, s77")
    a("v_mov_b32 v6, s78")
    a("v_mov_b32 v7, s79")
    a("buffer_store_dwordx4 v[4:7], v2, s[52:55], 0 offen")
    a("s_waitcnt vmcnt(0)")
    a.lab(f"L_rt_skip{k}")
rt_end.n = 0
def stamp_flush(a, n, wgsel):
    if not STAMP: return
    k = stamp_flush.n; stamp_flush.n += 1
    a("s_waitcnt vmcnt(0) lgkmcnt(0)")
    a(f"s_cmp_lg_u32 s2, {wgsel}")
    a(f"s_cbranch_scc1 L_st_skip{k}")
    a(f"s_load_dwordx2 s[56:57], s[0:1], {KA_DBG}")
    a("s_waitcnt lgkmcnt(0)")
    srd(a, 52, 56, 57, 256)
    a("v_cmp_eq_u32 vcc, 0, v0")
    a("s_and_saveexec_b64 s[58:59], vcc")
    a(f"s_cbranch_execz L_st_skip{k}")
    a("v_mov_b32 v2, 0")
    for i in range(n):
        a(f"s_sub_u32 s56, s{60+2*i}, s60")
        a("v_mov_b32 v3, s56")
        a(f"buffer_store_dword v3, v2, s[52:55], 0 offen offset:{4*i}")
    a("s_waitcnt vmcnt(0)")
    a.lab(f"L_st_skip{k}")
stamp_flush.n = 0

def wave_sum(a, v, t, vp32):
    for x in (1, 2, 4, 8, 16):
        a(f"ds_swizzle_b32 v{t}, v{v} offset:{(x << 10) | 0x1f}")
        a("s_waitcnt lgkmcnt(0)")
        a(f"v_add_f32 v{v}, v{v}, v{t}")
    a(f"ds_bpermute_b32 v{t}, v{vp32}, v{v}")
    a("s_waitcnt lgkmcnt(0)")
    a(f"v_add_f32 v{v}, v{v}, v{t}")

def round_bf16(a, d, s):
    a(f"v_cvt_pk_bf16_f32 v{d}, v{s}, v{s}")
    a(f"v_lshlrev_b32 v{d}, 16, v{d}")

def gen_ln(a, name):
    kernel_header(a, name)
    a("s_cmp_ge_u32 s2, 512")
    a("s_cbranch_scc1 L_ln_done")
    a(f"s_load_dwordx2 s[4:5], s[0:1], {KA_X}")
    a(f"s_load_dwordx2 s[6:7], s[0:1], {KA_WS}")
    a("v_and_b32 v1, 63, v0")
    a("v_lshrrev_b32 v2, 6, v0")
    a("s_lshl_b32 s3, s2, 2")
    a("v_add_u32 v2, s3, v2")
    a("v_lshlrev_b32 v2, 10, v2")
    a("v_lshl_add_u32 v2, v1, 4, v2")
    a("v_xor_b32 v3, 32, v1")
    a("v_lshlrev_b32 v3, 2, v3")
    a("s_waitcnt lgkmcnt(0)")
    srd(a, 8, 4, 5, 2048*512*2)
    srd_off(a, 12, 6, 7, WS_XN, 2048*512*2)
    a("buffer_load_dwordx4 v[4:7], v2, s[8:11], 0 offen")
    a("s_waitcnt vmcnt(0)")
    for i in range(4):
        a(f"v_lshlrev_b32 v{10+2*i}, 16, v{4+i}")
        a(f"v_and_b32 v{11+2*i}, 0xffff0000, v{4+i}")
    a("v_add_f32 v20, v10, v11")
    for i in range(2, 8):
        a(f"v_add_f32 v20, v20, v{10+i}")
    wave_sum(a, 20, 21, 3)
    a("v_mul_f32 v20, 0x3b000000, v20")
    a("v_mov_b32 v22, 0")
    for i in range(8):
        a(f"v_sub_f32 v23, v{10+i}, v20")
        a("v_fmac_f32 v22, v23, v23")
    wave_sum(a, 22, 21, 3)
    a("v_mul_f32 v22, 0x3b000000, v22")
    round_bf16(a, 20, 20)
    round_bf16(a, 22, 22)
    a("v_add_f32 v22, 0x3727c5ac, v22")
    round_bf16(a, 22, 22)
    a("v_sqrt_f32 v22, v22")
    a("s_nop 0")
    round_bf16(a, 22, 22)
    a("v_rcp_f32 v22, v22")
    a("s_nop 0")
    for i in range(8):
        a(f"v_sub_f32 v{10+i}, v{10+i}, v20")
    for i in range(4):
        a(f"v_cvt_pk_bf16_f32 v{4+i}, v{10+2*i}, v{11+2*i}")
    for i in range(4):
        a(f"v_lshlrev_b32 v{10+2*i}, 16, v{4+i}")
        a(f"v_and_b32 v{11+2*i}, 0xffff0000, v{4+i}")
    for i in range(8):
        a(f"v_mul_f32 v{10+i}, v{10+i}, v22")
    for i in range(4):
        a(f"v_cvt_pk_bf16_f32 v{4+i}, v{10+2*i}, v{11+2*i}")
    a("buffer_store_dwordx4 v[4:7], v2, s[12:15], 0 offen")
    a.lab("L_ln_done")
    a("s_endpgm")
    return kernel_desc(name, 32, 32)

class GemmCfg:
    def __init__(s, pfx, BM, BN, NST, btn=False, a_stride=1024, b_stride=1024, swap=False, segA=False, stats=False):
        s.stats = stats
        s.pfx = pfx; s.BM = BM; s.BN = BN; s.NST = NST; s.btn = btn
        s.a_stride = a_stride; s.b_stride = b_stride; s.swap = swap; s.segA = segA
        s.WM = 2; s.WN = 2; s.NW = 4
        s.FM = BM // s.WM // 16; s.FN = BN // s.WN // 16
        s.A_bytes = BM * 128
        s.RB = BN * 2
        s.B_bytes = 64 * s.RB if btn else BN * 128
        s.stage = s.A_bytes + s.B_bytes
        s.GA = BM // 8 // s.NW
        s.GB = s.B_bytes // 1024 // s.NW
        assert s.B_bytes % (1024 * s.NW) == 0
        s.L = s.GA + s.GB
        p = 4
        s.vAoff = p
        s.vBoff = p + s.GA
        s.vRd = p; p += 4 * NST
        p = max(p, 4 + s.L)
        p = (p + 3) // 4 * 4
        s.vFA = p; p += 2 * s.FM * 4
        s.vFB = p; p += 2 * s.FN * 4
        s.vAcc = p; p += s.FM * s.FN * 4
        s.vTmp = p; p += 8
        if stats:
            s.vCS = p; p += 4 * s.FN
            s.vOne = p; p += 4
            s.vTch = 124; s.vDum = 128
            if not btn:
                p = (p + 1) // 2 * 2
                s.vPfD = p; p += 4
                s.vPfA = p; p += 1
        else:
            p += 4
            s.vTch = p
            s.vDum = p
        s.PD = int(os.environ.get("PD", "6"))
        s.nvgpr = p
        assert p <= 256, p
        s.L_M = s.stage * NST
        s.L_R = s.L_M + 512
        s.L_CS = s.L_R + 512
    def lds(s):
        return s.stage * s.NST + (2048 if s.stats else 0)

def loader_setup(a, c, sArow, sBrow):
    T = c.vTmp
    a("v_lshrrev_b32 v2, 3, v1")
    a("v_and_b32 v3, 7, v1")
    if not os.environ.get("NOSWZ"):
        a("v_xor_b32 v3, v3, v2")
    a("v_lshlrev_b32 v3, 4, v3")
    a(f"s_mul_i32 s24, s16, {c.GA*8}")
    a(f"s_add_u32 s24, s24, s{sArow}")
    a(f"v_add_u32 v{T}, s24, v2")
    a(f"s_mov_b32 s25, {c.a_stride}")
    a(f"v_mul_lo_u32 v{T}, v{T}, s25")
    a(f"v_add_u32 v{T}, v{T}, v3")
    for i in range(c.GA):
        a(f"v_add_u32 v{c.vAoff+i}, {i*8*c.a_stride - (i % 4)*1024}, v{T}")
    if not c.btn:
        a(f"s_mul_i32 s24, s16, {c.GB*8}")
        a(f"s_add_u32 s24, s24, s{sBrow}")
        a(f"v_add_u32 v{T}, s24, v2")
        a(f"s_mov_b32 s25, {c.b_stride}")
        a(f"v_mul_lo_u32 v{T}, v{T}, s25")
        a(f"v_add_u32 v{T}, v{T}, v3")
        for i in range(c.GB):
            a(f"v_add_u32 v{c.vBoff+i}, {i*8*c.b_stride - (i % 4)*1024}, v{T}")
    else:
        assert c.RB == 448
        a(f"s_mul_i32 s24, s16, {c.GB*64}")
        a(f"s_lshl_b32 s25, s{sBrow}, 1")
        for i in range(c.GB):
            a(f"v_add_u32 v{T}, s24, v1")
            if i:
                a(f"v_add_u32 v{T}, {i*64}, v{T}")
            a(f"v_mul_u32_u24 v{T+1}, 2341, v{T}")
            a(f"v_lshrrev_b32 v{T+1}, 16, v{T+1}")
            a(f"v_mul_u32_u24 v{T+2}, 28, v{T+1}")
            a(f"v_sub_u32 v{T+2}, v{T}, v{T+2}")
            a(f"v_lshrrev_b32 v{T+3}, 2, v{T+1}")
            a(f"v_and_b32 v{T+3}, 2, v{T+3}")
            a(f"v_xor_b32 v{T+2}, v{T+2}, v{T+3}")
            a(f"v_lshlrev_b32 v{T+2}, 4, v{T+2}")
            a(f"v_mul_u32_u24 v{T+1}, {c.b_stride}, v{T+1}")
            a(f"v_add3_u32 v{c.vBoff+i}, v{T+1}, v{T+2}, s25")
            if i % 4:
                a(f"v_subrev_u32 v{c.vBoff+i}, {(i % 4)*1024}, v{c.vBoff+i}")
    a(f"s_mul_i32 s22, s16, {c.GA*1024}")
    a(f"s_mul_i32 s23, s16, {c.GB*1024}")
    a(f"s_add_u32 s23, s23, {c.A_bytes}")

def compute_setup(a, c):
    T = c.vTmp
    a("s_lshr_b32 s24, s16, 1")
    a("s_and_b32 s25, s16, 1")
    a("v_and_b32 v2, 15, v1")
    a("v_lshrrev_b32 v3, 4, v1")
    a(f"v_and_b32 v{T}, 7, v1")
    a(f"v_xor_b32 v{T}, v{T}, v3")
    a(f"v_lshlrev_b32 v{T}, 4, v{T}")
    a(f"s_mul_i32 s12, s24, {c.BM//c.WM*128}")
    a(f"v_lshl_add_u32 v{T+1}, v2, 7, v{T}")
    a(f"v_add_u32 v{T+1}, s12, v{T+1}")
    for s in range(c.NST):
        a(f"v_add_u32 v{c.vRd+4*s}, {s*c.stage}, v{T+1}")
        a(f"v_xor_b32 v{c.vRd+4*s+1}, 64, v{c.vRd+4*s}")
    if not c.btn:
        a(f"s_mul_i32 s12, s25, {c.BN//c.WN*128}")
        a(f"s_add_u32 s12, s12, {c.A_bytes}")
        a(f"v_lshl_add_u32 v{T+1}, v2, 7, v{T}")
        a(f"v_add_u32 v{T+1}, s12, v{T+1}")
        for s in range(c.NST):
            a(f"v_add_u32 v{c.vRd+4*s+2}, {s*c.stage}, v{T+1}")
            a(f"v_xor_b32 v{c.vRd+4*s+3}, 64, v{c.vRd+4*s+2}")
    else:
        a(f"v_lshrrev_b32 v{T}, 2, v2")
        a(f"v_lshl_add_u32 v{T}, v3, 3, v{T}")
        a(f"v_mul_u32_u24 v{T}, {c.RB}, v{T}")
        a(f"v_and_b32 v{T+1}, 3, v2")
        a(f"v_lshl_add_u32 v{T}, v{T+1}, 3, v{T}")
        a(f"s_mul_i32 s12, s25, {c.FN*32}")
        a(f"s_add_u32 s12, s12, {c.A_bytes}")
        a(f"v_add_u32 v{T}, s12, v{T}")
        a(f"v_and_b32 v{T+1}, 1, v3")
        a(f"v_lshlrev_b32 v{T+1}, 5, v{T+1}")
        a(f"s_mul_i32 s12, s25, {c.FN}")
        a("s_and_b32 s12, s12, 1")
        a("s_lshl_b32 s12, s12, 1")
        a("s_sub_u32 s12, 1, s12")
        a(f"v_mul_lo_u32 v{T+1}, v{T+1}, s12")
        a(f"v_add_u32 v{T+2}, v{T}, v{T+1}")
        a(f"v_sub_u32 v{T+3}, v{T}, v{T+1}")
        for s in range(c.NST):
            a(f"v_add_u32 v{c.vRd+4*s+2}, {s*c.stage}, v{T+2}")
            a(f"v_add_u32 v{c.vRd+4*s+3}, {s*c.stage}, v{T+3}")
    for i in range(c.FM * c.FN * 4):
        a(f"v_mov_b32 v{c.vAcc+i}, 0")
    if c.stats:
        for i in range(4 * c.FN):
            a(f"v_mov_b32 v{c.vCS+i}, 0")
        for i in range(4):
            a(f"v_mov_b32 v{c.vOne+i}, 0x3f803f80")

def step_prep(a, c):
    a("s_add_u32 s25, s19, s49")
    a("s_cmp_ge_u32 s25, s54")
    a("s_cselect_b32 s24, s51, 0")
    a("s_sub_u32 s25, s25, s24")
    if c.segA and ILV:
        a("s_lshl_b32 s25, s25, 2")
        a("s_add_u32 s25, s25, s46")
    if c.segA:
        a("s_lshr_b32 s24, s25, 5")
        a("s_and_b32 s20, s25, 31")
        a("s_lshl_b32 s20, s20, 7")
        a("s_cmp_eq_u32 s24, 0")
        a("s_cselect_b64 s[4:5], s[26:27], s[28:29]")
        a("s_cmp_eq_u32 s24, 2")
        a("s_cselect_b64 s[4:5], s[30:31], s[4:5]")
    else:
        a("s_lshl_b32 s20, s25, 7")
    if c.btn:
        a(f"s_mul_i32 s21, s25, {64*c.b_stride}")
    else:
        a("s_lshl_b32 s21, s25, 7")
    a("s_add_u32 s19, s19, 1")

def touch_setup(a, c, sArow, sBrow):
    T = c.vTmp
    a(f"v_and_b32 v{T}, 31, v1")
    a(f"s_mul_i32 s24, s16, {c.BM//4}")
    a(f"s_add_u32 s24, s24, s{sArow}")
    a(f"v_add_u32 v{T+1}, s24, v{T}")
    a(f"s_mov_b32 s25, {c.a_stride}")
    a(f"v_mul_lo_u32 v{c.vTch}, v{T+1}, s25")
    if not c.btn:
        a(f"s_mul_i32 s24, s16, {c.BN//4}")
        a(f"s_add_u32 s24, s24, s{sBrow}")
        a(f"v_add_u32 v{T+1}, s24, v{T}")
        a(f"s_mov_b32 s25, {c.b_stride}")
        a(f"v_mul_lo_u32 v{c.vTch+1}, v{T+1}, s25")
    else:
        a(f"v_and_b32 v{T}, 15, v1")
        a("s_lshl_b32 s24, s16, 4")
        a(f"v_add_u32 v{T}, s24, v{T}")
        a(f"v_mul_u32_u24 v{T}, {c.b_stride}, v{T}")
        a(f"s_lshl_b32 s25, s{sBrow}, 1")
        a(f"v_add_u32 v{T}, s25, v{T}")
        a(f"v_lshrrev_b32 v{T+1}, 4, v1")
        a(f"v_lshl_add_u32 v{c.vTch+1}, v{T+1}, 7, v{T}")
        a(f"v_add_u32 v{c.vTch+2}, {c.RB-4}, v{T}")

def touch_issue(a, c):
    step_prep(a, c)
    a(f"buffer_load_dword v{c.vTch+3}, v{c.vTch}, s[4:7], s20 offen")
    a(f"buffer_load_dword v{c.vTch+3}, v{c.vTch+1}, s[8:11], s21 offen")
    if c.btn:
        a(f"buffer_load_dword v{c.vTch+3}, v{c.vTch+2}, s[8:11], s21 offen")

def panel_prefetch(a, c, sArow):
    P = c.pfx
    D = c.vDum
    a("s_lshr_b32 s24, s48, 2")
    a("s_lshl_b32 s25, s16, 3")
    a("s_add_u32 s24, s24, s25")
    a(f"s_add_u32 s24, s24, s{sArow}")
    a("s_lshl_b32 s24, s24, 12")
    a(f"v_lshl_add_u32 v{c.vTch}, v1, 4, s24")
    a("s_lshr_b32 s20, s17, 3")
    a("s_sub_u32 s21, s18, 1")
    a("s_lshr_b32 s21, s21, 3")
    a.lab(f"{P}_pf")
    a("s_lshr_b32 s24, s20, 2")
    a("s_cmp_eq_u32 s24, 0")
    a("s_cselect_b64 s[4:5], s[26:27], s[28:29]")
    a("s_cmp_eq_u32 s24, 2")
    a("s_cselect_b64 s[4:5], s[30:31], s[4:5]")
    a("s_and_b32 s25, s20, 3")
    a("s_lshl_b32 s25, s25, 10")
    for r in range(8):
        a(f"buffer_load_dwordx4 v[{D}:{D+3}], v{c.vTch}, s[4:7], s25 offen")
        if r < 7:
            a("s_add_u32 s25, s25, 4096")
    a("s_add_u32 s20, s20, 1")
    a("s_cmp_le_u32 s20, s21")
    a(f"s_cbranch_scc1 {P}_pf")

SB = 32
def stats_setup(a, c):
    a("v_lshrrev_b32 v2, 1, v1")
    a("s_lshl_b32 s24, s16, 5")
    a("v_add_u32 v2, s24, v2")
    a("v_and_b32 v3, 1, v1")
    a("v_lshlrev_b32 v3, 6, v3")
    a("v_lshl_add_u32 v3, v2, 7, v3")
    a("v_lshrrev_b32 v2, 1, v2")
    for k in range(4):
        a(f"v_add_u32 v{SB+8}, {k}, v2")
        a(f"v_and_b32 v{SB+8}, 3, v{SB+8}")
        a(f"v_lshl_add_u32 v{SB+k}, v{SB+8}, 4, v3")
    for k in range(8, 12):
        a(f"v_mov_b32 v{SB+k}, 0")
    a(f"v_mov_b32 v{SB+14}, 0x3f803f80")
    a("s_mov_b32 s55, 0")

def stats_stage(a, c):
    Bf = 64
    for k in range(4):
        a(f"v_add_u32 v{Bf+48+k}, s55, v{SB+k}")
        a(f"ds_read_b128 v[{Bf+4*k}:{Bf+4*k+3}], v{Bf+48+k}")
    for k in range(16):
        if k % 4 == 0:
            a(f"s_waitcnt lgkmcnt({3-k//4})")
        a(f"v_dot2_f32_bf16 v{SB+8+(k&1)}, v{Bf+k}, v{SB+14}, v{SB+8+(k&1)}")
        a(f"v_dot2_f32_bf16 v{SB+10+(k&1)}, v{Bf+k}, v{Bf+k}, v{SB+10+(k&1)}")
    a(f"s_add_u32 s55, s55, {c.stage}")
    a(f"s_cmp_ge_u32 s55, {c.stage*c.NST}")
    a("s_cselect_b32 s55, 0, s55")

def stats_final(a, c):
    S, Q = SB + 8, SB + 10
    a("s_nop 3")
    a(f"v_add_f32 v{S}, v{S}, v{S+1}")
    a(f"v_add_f32 v{Q}, v{Q}, v{Q+1}")
    a("s_nop 1")
    a(f"v_add_f32_dpp v{S}, v{S}, v{S} quad_perm:[1,0,3,2] row_mask:0xf bank_mask:0xf")
    a(f"v_add_f32_dpp v{Q}, v{Q}, v{Q} quad_perm:[1,0,3,2] row_mask:0xf bank_mask:0xf")
    a(f"v_mul_f32 v{S}, 0x3b000000, v{S}")
    a(f"v_mul_f32 v{Q}, 0x3b000000, v{Q}")
    a(f"v_fma_f32 v{Q}, -v{S}, v{S}, v{Q}")
    a(f"v_max_f32 v{Q}, 0, v{Q}")
    round_bf16(a, S, S)
    round_bf16(a, Q, Q)
    a(f"v_add_f32 v{Q}, 0x3727c5ac, v{Q}")
    round_bf16(a, Q, Q)
    a(f"v_sqrt_f32 v{Q}, v{Q}")
    a("s_nop 0")
    round_bf16(a, Q, Q)
    a(f"v_rcp_f32 v{Q}, v{Q}")
    a("v_lshrrev_b32 v2, 1, v1")
    a("s_lshl_b32 s24, s16, 5")
    a("v_add_u32 v2, s24, v2")
    a("v_lshlrev_b32 v2, 2, v2")
    a(f"v_add_u32 v2, {c.L_M}, v2")
    a(f"ds_write_b32 v2, v{S}")
    a(f"ds_write_b32 v2, v{Q} offset:512")
    a("s_waitcnt lgkmcnt(0)")

def loader_issue(a, c):
    step_prep(a, c)
    a("s_add_u32 s24, s22, s52")
    for i in range(c.GA):
        if i % 4 == 0:
            a(f"s_add_u32 m0, s24, {(i//4)*4096}")
            a("s_nop 0")
        off = (i % 4) * 1024
        if not os.environ.get("NODMA"):
            a(f"buffer_load_dwordx4 v{c.vAoff+i}, s[4:7], s20 offen" + (f" offset:{off}" if off else "") + " lds")
    a("s_add_u32 s24, s23, s52")
    for i in range(c.GB):
        if i % 4 == 0:
            a(f"s_add_u32 m0, s24, {(i//4)*4096}")
            a("s_nop 0")
        off = (i % 4) * 1024
        if not os.environ.get("NODMA"):
            a(f"buffer_load_dwordx4 v{c.vBoff+i}, s[8:11], s21 offen" + (f" offset:{off}" if off else "") + " lds")
    a(f"s_add_u32 s52, s52, {c.stage}")
    a(f"s_cmp_ge_u32 s52, {c.stage*c.NST}")
    a("s_cselect_b32 s52, 0, s52")

def frag_reads(c, slot, kk):
    r = []
    if os.environ.get("NODSR"):
        return []
    for i in range(c.FM):
        d = c.vFA + (kk * c.FM + i) * 4
        r.append(f"ds_read_b128 v[{d}:{d+3}], v{c.vRd+4*slot+kk} offset:{i*2048}")
    for j in range(c.FN):
        d = c.vFB + (kk * c.FN + j) * 4
        if not c.btn:
            r.append(f"ds_read_b128 v[{d}:{d+3}], v{c.vRd+4*slot+2+kk} offset:{j*2048}")
        else:
            base = c.vRd + 4 * slot + 2 + (j & 1)
            o = j * 32 + kk * 32 * c.RB
            r.append(f"ds_read_b64_tr_b16 v[{d}:{d+1}], v{base} offset:{o}")
            r.append(f"ds_read_b64_tr_b16 v[{d+2}:{d+3}], v{base} offset:{o + 4*c.RB}")
    return r

def mfmas(c, kk):
    r = []
    if os.environ.get("NOMFMA"):
        return ["s_nop 0"] * (c.FM * c.FN)
    for i in range(c.FM):
        for j in range(c.FN):
            fa = c.vFA + (kk * c.FM + i) * 4
            fb = c.vFB + (kk * c.FN + j) * 4
            d = c.vAcc + (i * c.FN + j) * 4
            x, y = (fb, fa) if c.swap else (fa, fb)
            r.append(f"v_mfma_f32_16x16x32_bf16 v[{d}:{d+3}], v[{x}:{x+3}], v[{y}:{y+3}], v[{d}:{d+3}]")
    if c.stats:
        for j in range(c.FN):
            fb = c.vFB + (kk * c.FN + j) * 4
            d = c.vCS + 4 * j
            x, y = (fb, c.vOne) if c.swap else (c.vOne, fb)
            r.append(f"v_mfma_f32_16x16x32_bf16 v[{d}:{d+3}], v[{x}:{x+3}], v[{y}:{y+3}], v[{d}:{d+3}]")
    return r

def interleave(a, mf, reads):
    n = len(mf)
    slots = [[] for _ in range(n)]
    for i, r in enumerate(reads):
        slots[min(n - 1, i * (n - 3) // max(1, len(reads)))].append(r)
    for i in range(n):
        a(mf[i])
        for x in slots[i]:
            a(x)

def gemm(a, c, sArow, sBrow):
    P = c.pfx; N = c.NST
    a("s_mov_b32 s54, s18")
    if c.segA and PFW:
        a("s_cmp_eq_u32 s53, 2")
        a(f"s_cbranch_scc1 {P}_pfw")
    a("s_cmp_lg_u32 s53, 0")
    a(f"s_cbranch_scc1 {P}_loader")
    if c.segA and os.environ.get("PF2"):
        panel_prefetch(a, c, sArow)
    PFD = (P == "k1d" and not os.environ.get("NOPF"))
    def pf4():
        if not PFD: return
        for r in range(4):
            a(f"buffer_load_dwordx4 v[{c.vPfD}:{c.vPfD+3}], v{c.vPfA}, s[12:15], s58 offen" + (f" offset:{r*1024}" if r else ""))
        a("s_add_u32 s58, s58, 4096")
    if PFD:
        a("s_lshl_b32 s24, s44, 3")
        a("s_add_u32 s24, s24, s45")
        a("s_cmp_lt_u32 s24, 64")
        a("s_cselect_b64 s[20:21], s[26:27], s[28:29]")
        a("s_and_b32 s24, s24, 63")
        a("s_lshl_b32 s24, s24, 17")
        a("s_lshl_b32 s25, s16, 15")
        a("s_add_u32 s58, s24, s25")
    compute_setup(a, c)
    if PFD:
        srd(a, 12, 20, 21, 2048*4096)
        a(f"v_lshlrev_b32 v{c.vPfA}, 4, v1")
    a("s_barrier")
    pf4()
    for x in frag_reads(c, 0, 0):
        a(x)
    a("s_waitcnt lgkmcnt(0)")
    interleave(a, mfmas(c, 0), frag_reads(c, 0, 1))
    a("s_waitcnt lgkmcnt(0)")
    a("s_barrier")
    a("s_sub_u32 s18, s18, 1")
    a.lab(f"{P}_cloop")
    for s in range(N):
        nx = (s + 1) % N
        pf4()
        interleave(a, mfmas(c, 1), frag_reads(c, nx, 0))
        a("s_waitcnt lgkmcnt(0)")
        interleave(a, mfmas(c, 0), frag_reads(c, nx, 1))
        a("s_waitcnt lgkmcnt(0)")
        a("s_barrier")
        a("s_add_u32 s17, s17, 1")
        a("s_cmp_ge_u32 s17, s18")
        a(f"s_cbranch_scc1 {P}_cfin")
    a(f"s_branch {P}_cloop")
    a.lab(f"{P}_cfin")
    for x in mfmas(c, 1):
        a(x)
    if c.stats:
        a("s_barrier")
    a("s_nop 7")
    a("s_nop 7")
    a(f"s_branch {P}_cdone")
    a.lab(f"{P}_loader")
    loader_setup(a, c, sArow, sBrow)
    if c.stats:
        stats_setup(a, c)
    if c.btn:
        a("s_cmp_lg_u32 s16, 0")
        a(f"s_cbranch_scc1 {P}_nb")
        srd(a, 12, 40, 41, 1792*2)
        a("v_min_u32 v2, 55, v1")
        a("v_lshlrev_b32 v3, 3, v2")
        a(f"s_lshl_b32 s24, s{sBrow}, 1")
        a("v_add_u32 v3, s24, v3")
        a("buffer_load_dwordx2 v[20:21], v3, s[12:15], 0 offen")
        a("v_lshlrev_b32 v22, 4, v2")
        a(f"v_add_u32 v22, {c.L_CS}, v22")
        a.lab(f"{P}_nb")
    a("s_mov_b32 s52, 0")
    for s in range(N):
        loader_issue(a, c)
    a(f"s_waitcnt vmcnt({c.L*(N-1)})")
    if c.btn:
        a("s_cmp_lg_u32 s16, 0")
        a(f"s_cbranch_scc1 {P}_nb2")
        a("v_lshlrev_b32 v24, 16, v20")
        a("v_and_b32 v25, 0xffff0000, v20")
        a("v_lshlrev_b32 v26, 16, v21")
        a("v_and_b32 v27, 0xffff0000, v21")
        a("ds_write_b128 v22, v[24:27]")
        a("s_waitcnt lgkmcnt(0)")
        a.lab(f"{P}_nb2")
    a("s_barrier")
    if c.stats:
        stats_stage(a, c)
    a(f"s_waitcnt vmcnt({c.L*(N-2)})")
    a("s_barrier")
    a("s_sub_u32 s50, s18, 1")
    a.lab(f"{P}_lloop")
    a("s_cmp_ge_u32 s19, s18")
    a(f"s_cbranch_scc1 {P}_lnd")
    loader_issue(a, c)
    if c.stats:
        stats_stage(a, c)
    a(f"s_waitcnt vmcnt({c.L*(N-2)})")
    a(f"s_branch {P}_lbar")
    a.lab(f"{P}_lnd")
    if c.stats:
        stats_stage(a, c)
    a("s_waitcnt vmcnt(0)")
    a.lab(f"{P}_lbar")
    a("s_barrier")
    a("s_add_u32 s17, s17, 1")
    a("s_cmp_lt_u32 s17, s50")
    a(f"s_cbranch_scc1 {P}_lloop")
    if c.stats:
        stats_final(a, c)
        a("s_barrier")
    a(f"s_branch {P}_ldone")
    if c.segA and PFW:
        a.lab(f"{P}_pfw")
        a("v_lshrrev_b32 v2, 3, v1")
        a("v_and_b32 v3, 7, v1")
        a("v_lshlrev_b32 v3, 4, v3")
        a("s_lshr_b32 s24, s48, 2")
        a(f"s_add_u32 s24, s24, s{sArow}")
        a("v_add_u32 v4, s24, v2")
        a("v_lshl_add_u32 v4, v4, 12, v3")
        for i in range(1, 4):
            a(f"v_add_u32 v{4+i}, {i*8*4096}, v4")
        a(f"s_lshr_b32 s24, s{sArow}, 7")
        a("s_and_b32 s24, s24, 7")
        a("s_lshl_b32 s24, s24, 4")
        a(f"s_add_u32 s24, s24, s{sBrow}")
        a("v_add_u32 v8, s24, v2")
        a(f"s_mov_b32 s25, {c.b_stride}")
        a("v_mul_lo_u32 v8, v8, s25")
        a("v_add_u32 v8, v8, v3")
        a(f"v_add_u32 v9, {8*c.b_stride}, v8")
        a(f"s_add_u32 s19, s19, {N}")
        def pf_stage(tag):
            a("s_cmp_ge_u32 s19, s54")
            a(f"s_cbranch_scc1 {P}_pfs{tag}")
            step_prep(a, c)
            for i in range(4):
                a(f"buffer_load_dwordx4 v[12:15], v{4+i}, s[4:7], s20 offen")
            for i in range(2):
                a(f"buffer_load_dwordx4 v[12:15], v{8+i}, s[8:11], s21 offen")
            a("s_waitcnt vmcnt(36)")
            a.lab(f"{P}_pfs{tag}")
        for k in range(c.PD):
            pf_stage(f"p{k}")
        a("s_barrier")
        a("s_barrier")
        a("s_sub_u32 s50, s18, 1")
        a.lab(f"{P}_pfloop")
        pf_stage("l")
        a("s_barrier")
        a("s_add_u32 s17, s17, 1")
        a("s_cmp_lt_u32 s17, s50")
        a(f"s_cbranch_scc1 {P}_pfloop")
        a("s_endpgm")

def role_setup(a):
    a("v_and_b32 v1, 63, v0")
    a("v_lshrrev_b32 v2, 6, v0")
    a("s_nop 0")
    a("v_readfirstlane_b32 s16, v2")
    a("s_lshr_b32 s53, s16, 2")
    a("s_and_b32 s16, s16, 3")

def store_phase(a, vT, cpr, nrows, lds_stride, g_stride, srdreg, soff, flags=""):
    nit = nrows * cpr // 512
    assert nit * 512 == nrows * cpr
    regs = []
    for i in range(nit):
        a(f"v_add_u32 v{vT}, {512*i}, v0")
        if cpr in (16, 32):
            sh = 4 if cpr == 16 else 5
            a(f"v_lshrrev_b32 v{vT+1}, {sh}, v{vT}")
            a(f"v_and_b32 v{vT+2}, {cpr-1}, v{vT}")
        else:
            assert cpr == 28
            a(f"v_mul_u32_u24 v{vT+1}, 2341, v{vT}")
            a(f"v_lshrrev_b32 v{vT+1}, 16, v{vT+1}")
            a(f"v_mul_u32_u24 v{vT+2}, 28, v{vT+1}")
            a(f"v_sub_u32 v{vT+2}, v{vT}, v{vT+2}")
        a(f"v_lshlrev_b32 v{vT+2}, 4, v{vT+2}")
        a(f"v_mul_u32_u24 v{vT+3}, {lds_stride}, v{vT+1}")
        a(f"v_add_u32 v{vT+3}, v{vT+3}, v{vT+2}")
        d = 8 + 4 * i
        a(f"ds_read_b128 v[{d}:{d+3}], v{vT+3}")
        a(f"s_mov_b32 s24, {g_stride}")
        a(f"v_mul_lo_u32 v{vT+1}, v{vT+1}, s24")
        a(f"v_add_u32 v{48+i}, v{vT+1}, v{vT+2}")
    for i in range(nit):
        d = 8 + 4 * i
        a(f"s_waitcnt lgkmcnt({nit-1-i})")
        a(f"buffer_store_dwordx4 v[{d}:{d+3}], v{48+i}, s[{srdreg}:{srdreg+3}], s{soff} offen" + flags)

def gen_k1(a, name):
    cd = GemmCfg("k1d", 128, 128, 4, btn=False, a_stride=1024, b_stride=1024, swap=False, stats=True)
    cm = GemmCfg("k1m", 128, 224, 3, btn=True, a_stride=1024, b_stride=3584, swap=True, stats=True)
    kernel_header(a, name)
    a("s_cmp_ge_u32 s2, 256")
    a("s_cbranch_scc1 L_k1_end")
    rt_start(a)
    stamp(a, 0)
    a(f"s_load_dwordx2 s[32:33], s[0:1], {KA_WS}")
    a(f"s_load_dwordx2 s[34:35], s[0:1], {KA_DR}")
    a(f"s_load_dwordx2 s[36:37], s[0:1], {KA_DI}")
    a(f"s_load_dwordx2 s[38:39], s[0:1], {KA_W1}")
    a(f"s_load_dwordx2 s[40:41], s[0:1], {KA_B1}")
    a(f"s_load_dwordx2 s[42:43], s[0:1], {KA_W2}")
    a(f"s_load_dwordx2 s[26:27], s[0:1], {KA_CR}")
    a(f"s_load_dwordx2 s[28:29], s[0:1], {KA_CI}")
    a(f"s_load_dwordx2 s[30:31], s[0:1], {KA_X}")
    role_setup(a)
    a("s_lshr_b32 s44, s2, 4")
    a("s_and_b32 s45, s2, 15")
    a("s_lshl_b32 s46, s44, 7")
    a("s_mov_b32 s17, 0")
    a("s_mov_b32 s18, 8")
    a("s_mov_b32 s19, 0")
    a("s_and_b32 s49, s44, 7")
    a("s_mov_b32 s51, 8")
    a("s_waitcnt lgkmcnt(0)")
    srd(a, 4, 30, 31, 2048*512*2)
    a("s_cmp_ge_u32 s45, 8")
    a("s_cbranch_scc1 L_k1_mlp")
    c = cd; T = c.vTmp
    a("s_cmp_lt_u32 s45, 4")
    a("s_cselect_b64 s[24:25], s[34:35], s[36:37]")
    srd(a, 8, 24, 25, 512*512*2)
    a("s_and_b32 s47, s45, 3")
    a("s_lshl_b32 s47, s47, 7")
    gemm(a, c, 46, 47)
    a.lab("k1d_cdone")
    LS = 272
    a("s_cmp_lt_u32 s45, 4")
    a("s_mov_b32 s26, 1.0")
    a("s_cselect_b32 s26, s26, -1.0")
    a("s_lshr_b32 s27, s16, 1")
    a("s_and_b32 s28, s16, 1")
    a(f"s_mul_i32 s29, s28, {c.BN//c.WN*LS}")
    a(f"s_mul_i32 s30, s27, {c.BM//c.WM*2}")
    a("s_add_u32 s29, s29, s30")
    a("v_and_b32 v2, 15, v1")
    a("v_lshrrev_b32 v3, 4, v1")
    Mr = c.vFA; Rr = c.vFA + 16; Cs = c.vFB
    a(f"s_mul_i32 s30, s27, {c.BM//c.WM*4}")
    a(f"s_add_u32 s30, s30, {c.L_M}")
    a(f"v_lshlrev_b32 v{T}, 4, v3")
    a(f"v_add_u32 v{T}, s30, v{T}")
    for i in range(c.FM):
        a(f"ds_read_b128 v[{Mr+4*i}:{Mr+4*i+3}], v{T} offset:{i*64}")
        a(f"ds_read_b128 v[{Rr+4*i}:{Rr+4*i+3}], v{T} offset:{512 + i*64}")
    a(f"v_mul_u32_u24 v2, {LS}, v2")
    a("v_lshl_add_u32 v2, v3, 3, v2")
    a("v_add_u32 v2, s29, v2")
    a("s_waitcnt lgkmcnt(0)")
    for k in range(c.FM * 4):
        a(f"v_mul_f32 v{Rr+k}, s26, v{Rr+k}")
    for j in range(c.FN):
        for i in range(c.FM):
            d = c.vAcc + (i * c.FN + j) * 4
            for r in range(4):
                a(f"v_fma_f32 v{T+r}, -v{Mr+4*i+r}, v{c.vCS+4*j}, v{d+r}")
                a(f"v_mul_f32 v{T+r}, v{T+r}, v{Rr+4*i+r}")
            a(f"v_cvt_pk_bf16_f32 v{T+4+2*(i&1)}, v{T}, v{T+1}")
            a(f"v_cvt_pk_bf16_f32 v{T+5+2*(i&1)}, v{T+2}, v{T+3}")
            a(f"ds_write_b64 v2, v[{T+4+2*(i&1)}:{T+5+2*(i&1)}] offset:{j*16*LS + i*32}")
    a("s_waitcnt lgkmcnt(0)")
    a.lab("k1d_ldone")
    a("s_barrier")
    srd_off(a, 12, 32, 33, WS_BT, 512*BT_STRIDE)
    a("s_cmp_lt_u32 s45, 4")
    a("s_cselect_b32 s24, 0, 4096")
    a(f"s_mul_i32 s25, s47, {BT_STRIDE}")
    a("s_add_u32 s25, s25, s24")
    a("s_lshl_b32 s24, s46, 1")
    a("s_add_u32 s31, s25, s24")
    store_phase(a, 4, 16, 128, LS, BT_STRIDE, 12, 31)
    a("s_cmp_lg_u32 s53, 0")
    a("s_cbranch_scc1 L_k1_end")
    a("s_lshl_b32 s24, s44, 3")
    a("s_add_u32 s24, s24, s45")
    a("s_cmp_ge_u32 s24, 112")
    a("s_cbranch_scc1 L_k1_end")
    a("s_lshr_b32 s25, s24, 2")
    a("s_and_b32 s26, s24, 3")
    srd(a, 8, 42, 43, 1792*512*2)
    W2L = 65536
    a("s_lshl_b32 s27, s16, 8")
    a(f"s_mul_i32 s28, s25, {64*1024}")
    a("s_lshl_b32 s29, s26, 8")
    a("s_add_u32 s28, s28, s29")
    for i in range(4):
        a(f"v_add_u32 v{T}, s27, v1")
        if i:
            a(f"v_add_u32 v{T}, {i*64}, v{T}")
        a(f"v_lshrrev_b32 v{T+1}, 4, v{T}")
        a(f"v_and_b32 v{T+2}, 15, v{T}")
        a(f"v_and_b32 v{T+3}, 3, v{T+1}")
        a(f"v_lshrrev_b32 v{T+4}, 1, v{T+1}")
        a(f"v_and_b32 v{T+4}, 4, v{T+4}")
        a(f"v_or_b32 v{T+3}, v{T+3}, v{T+4}")
        a(f"v_lshlrev_b32 v{T+3}, 1, v{T+3}")
        a(f"v_xor_b32 v{T+2}, v{T+2}, v{T+3}")
        a(f"v_lshlrev_b32 v{T+2}, 4, v{T+2}")
        a(f"v_lshl_add_u32 v{T+8+i}, v{T+1}, 10, v{T+2}")
        if i:
            a(f"v_subrev_u32 v{T+8+i}, {i*1024}, v{T+8+i}")
    a("s_lshl_b32 s29, s16, 12")
    a(f"s_add_u32 m0, s29, {W2L}")
    a("s_nop 0")
    for i in range(4):
        a(f"buffer_load_dwordx4 v{T+8+i}, s[8:11], s28 offen" + (f" offset:{i*1024}" if i else "") + " lds")
    a("s_waitcnt vmcnt(0)")
    a("s_barrier")
    a("v_and_b32 v2, 15, v1")
    a("v_lshrrev_b32 v3, 4, v1")
    a(f"v_lshrrev_b32 v{T}, 2, v2")
    a(f"v_lshl_add_u32 v{T+1}, v3, 3, v{T}")
    a(f"v_lshlrev_b32 v{T+1}, 8, v{T+1}")
    a(f"v_and_b32 v{T+2}, 1, v3")
    a(f"v_lshl_or_b32 v{T+2}, v{T+2}, 2, v{T}")
    a(f"v_lshl_add_u32 v{T+1}, v{T+2}, 5, v{T+1}")
    a(f"v_and_b32 v{T+2}, 3, v2")
    a(f"v_lshl_add_u32 v{T+1}, v{T+2}, 3, v{T+1}")
    a("s_lshl_b32 s29, s16, 6")
    a(f"v_xor_b32 v{T+2}, s29, v{T+1}")
    a(f"v_xor_b32 v{T+3}, 32, v{T+2}")
    a(f"v_add_u32 v{T+2}, {W2L}, v{T+2}")
    a(f"v_add_u32 v{T+3}, {W2L}, v{T+3}")
    F = c.vFA
    for fi in range(2):
        for kk in range(2):
            d = F + (fi * 2 + kk) * 4
            a(f"ds_read_b64_tr_b16 v[{d}:{d+1}], v{T+2+fi} offset:{kk*32*256}")
            a(f"ds_read_b64_tr_b16 v[{d+2}:{d+3}], v{T+2+fi} offset:{kk*32*256 + 4*256}")
    a("s_lshl_b32 s29, s26, 7")
    a("s_lshl_b32 s30, s16, 5")
    a("s_add_u32 s29, s29, s30")
    a(f"v_add_u32 v{T}, s29, v2")
    a(f"s_mov_b32 s31, {BT_STRIDE}")
    a(f"v_mul_lo_u32 v{T}, v{T}, s31")
    a(f"v_lshl_add_u32 v{T}, v3, 4, v{T}")
    a("s_lshl_b32 s30, s25, 7")
    a(f"s_add_u32 s30, s30, {4096*2}")
    a(f"v_add_u32 v{T}, s30, v{T}")
    a(f"v_add_u32 v{T+1}, {16*BT_STRIDE}, v{T}")
    a("s_waitcnt lgkmcnt(0)")
    for fi in range(2):
        for kk in range(2):
            d = F + (fi * 2 + kk) * 4
            a(f"buffer_store_dwordx4 v[{d}:{d+3}], v{T+fi}, s[12:15], 0 offen offset:{kk*64}")
    a("s_branch L_k1_end")
    a.lab("L_k1_mlp")
    c = cm; T = c.vTmp
    srd(a, 8, 38, 39, 512*1792*2)
    a("s_sub_u32 s47, s45, 8")
    a("s_mul_i32 s47, s47, 224")
    stamp(a, 1)
    gemm(a, c, 46, 47)
    a.lab("k1m_cdone")
    stamp(a, 2)
    LS = 464
    srd(a, 8, 40, 41, 1792*2)
    a("s_lshr_b32 s27, s16, 1")
    a("s_and_b32 s28, s16, 1")
    a(f"s_mul_i32 s29, s28, {c.BN//c.WN*2}")
    a(f"s_mul_i32 s30, s27, {c.BM//c.WM*LS}")
    a("v_and_b32 v2, 15, v1")
    a("v_lshrrev_b32 v3, 4, v1")
    a("v_lshlrev_b32 v3, 3, v3")
    a("v_add_u32 v3, s29, v3")
    a(f"v_mul_u32_u24 v2, {LS}, v2")
    a("v_add3_u32 v2, v2, v3, s30")
    a("s_lshl_b32 s31, s47, 1")
    a("v_add_u32 v3, s31, v3")
    Bq = c.vFA
    Mr = c.vFA + 16; Rr = c.vFA + 20
    Bf = c.vFB
    Cs = c.vCS
    a(f"v_lshrrev_b32 v{T+1}, 4, v1")
    a(f"v_lshlrev_b32 v{T+1}, 4, v{T+1}")
    a(f"s_mul_i32 s30, s28, {c.BN//c.WN*4}")
    a(f"s_add_u32 s30, s30, {c.L_CS}")
    a(f"v_add_u32 v{T+1}, s30, v{T+1}")
    for j in range(c.FN):
        a(f"ds_read_b128 v[{Bf+4*j}:{Bf+4*j+3}], v{T+1} offset:{j*64}")
    a(f"v_and_b32 v{T}, 15, v1")
    a(f"s_mul_i32 s30, s27, {c.BM//c.WM*4}")
    a(f"s_add_u32 s30, s30, {c.L_M}")
    a(f"v_lshlrev_b32 v{T}, 2, v{T}")
    a(f"v_add_u32 v{T}, s30, v{T}")
    for i in range(c.FM):
        a(f"ds_read_b32 v{Mr+i}, v{T} offset:{i*64}")
        a(f"ds_read_b32 v{Rr+i}, v{T} offset:{512 + i*64}")
    a("s_waitcnt lgkmcnt(0)")
    for i in range(c.FM):
        for j in range(c.FN):
            d = c.vAcc + (i * c.FN + j) * 4
            o = T + 4 + 2 * (j & 1)
            for r in range(4):
                a(f"v_fma_f32 v{T+r}, -v{Mr+i}, v{Cs+4*j+r}, v{d+r}")
            for r in range(4):
                a(f"v_fma_f32 v{T+r}, v{T+r}, v{Rr+i}, v{Bf+4*j+r}")
            for r in range(4):
                a(f"v_max_f32 v{T+r}, 0, v{T+r}")
            for r in range(4):
                a(f"v_mul_f32 v{T+r}, v{T+r}, v{T+r}")
            a(f"v_cvt_pk_bf16_f32 v{o}, v{T}, v{T+1}")
            a(f"v_cvt_pk_bf16_f32 v{o+1}, v{T+2}, v{T+3}")
            a(f"ds_write_b64 v2, v[{o}:{o+1}] offset:{i*16*LS + j*32}")
    a("s_waitcnt lgkmcnt(0)")
    a.lab("k1m_ldone")
    a("s_barrier")
    stamp(a, 3)
    srd_off(a, 12, 32, 33, WS_H, 2048*4096)
    a("s_lshl_b32 s24, s46, 12")
    a("s_lshl_b32 s25, s47, 1")
    a("s_add_u32 s31, s24, s25")
    store_phase(a, 4, 28, 128, LS, 4096, 12, 31)
    stamp(a, 4)
    if STAMP:
        a("s_waitcnt vmcnt(0)")
    stamp(a, 5)
    stamp_flush(a, 6, 8)
    a.lab("L_k1_end")
    if os.environ.get("RT"):
        a("s_cmp_ge_u32 s2, 256")
        a("s_cbranch_scc1 L_k1_end2")
        rt_end(a, 0)
        a.lab("L_k1_end2")
    a("s_endpgm")
    nv = max(cd.nvgpr, cm.nvgpr)
    return kernel_desc(name, nv, 96), max(cd.lds(), cm.lds())

def gen_k2(a, name):
    c = GemmCfg("k2", 128, 128, 4, btn=False, a_stride=4096, b_stride=BT_STRIDE, swap=True, segA=True)
    T = c.vTmp
    kernel_header(a, name)
    a("s_cmp_ge_u32 s2, 256")
    a("s_cbranch_scc1 L_k2_end")
    rt_start(a)
    stamp(a, 0)
    a(f"s_load_dwordx2 s[26:27], s[0:1], {KA_CR}")
    a(f"s_load_dwordx2 s[28:29], s[0:1], {KA_CI}")
    a(f"s_load_dwordx2 s[32:33], s[0:1], {KA_WS}")
    a(f"s_load_dwordx2 s[34:35], s[0:1], {KA_DBG}")
    a(f"s_load_dwordx2 s[40:41], s[0:1], {KA_X}")
    a(f"s_load_dwordx2 s[42:43], s[0:1], {KA_B2}")
    a(f"s_load_dwordx2 s[56:57], s[0:1], {KA_OUT}")
    role_setup(a)
    a("s_and_b32 s44, s2, 7")
    a("s_lshr_b32 s45, s2, 3")
    a("s_lshr_b32 s46, s44, 1")
    a("s_and_b32 s47, s44, 1")
    a("s_lshl_b32 s47, s47, 3")
    a("s_lshr_b32 s48, s45, 2")
    a("s_add_u32 s47, s47, s48")
    a("s_and_b32 s48, s45, 3")
    a("s_lshl_b32 s47, s47, 7")
    a("s_lshl_b32 s48, s48, 7")
    if os.environ.get("FORCE_A0"):
        a("s_mov_b32 s47, 0")
    if os.environ.get("FORCE_B0"):
        a("s_mov_b32 s48, 0")
    if os.environ.get("FORCE_S0"):
        a("s_mov_b32 s46, 0")
    if ILV:
        a("s_mov_b32 s17, 0")
    else:
        a("s_mul_i32 s17, s46, 23")
    a("s_add_u32 s18, s17, 23")
    a("s_mov_b32 s19, s17")
    a("s_lshr_b32 s49, s45, 2")
    a(f"s_mul_i32 s49, s49, {ROT2}")
    a("s_and_b32 s50, s45, 3")
    a(f"s_mul_i32 s50, s50, {ROTN}")
    a("s_add_u32 s49, s49, s50")
    a("s_cmp_ge_u32 s49, 23")
    a("s_cselect_b32 s50, 23, 0")
    a("s_sub_u32 s49, s49, s50")
    a("s_mov_b32 s51, 23")
    a("s_waitcnt lgkmcnt(0)")
    a(f"s_add_u32 s30, s32, {WS_H}")
    a("s_addc_u32 s31, s33, 0")
    a("s_and_b32 s27, s27, 0xffff")
    a("s_and_b32 s29, s29, 0xffff")
    a("s_and_b32 s31, s31, 0xffff")
    srd(a, 4, 26, 27, 2048*4096)
    srd_off(a, 8, 32, 33, WS_BT, 512*BT_STRIDE)
    stamp(a, 1)
    gemm(a, c, 47, 48)
    a.lab("k2_cdone")
    stamp(a, 2)
    LS = 528
    a("s_lshr_b32 s27, s16, 1")
    a("s_and_b32 s28, s16, 1")
    a(f"s_mul_i32 s29, s28, {c.BN//c.WN*4}")
    a(f"s_mul_i32 s30, s27, {c.BM//c.WM*LS}")
    a("s_add_u32 s29, s29, s30")
    a("v_and_b32 v2, 15, v1")
    a("v_lshrrev_b32 v3, 4, v1")
    a(f"v_mul_u32_u24 v2, {LS}, v2")
    a("v_lshl_add_u32 v2, v3, 4, v2")
    a("v_add_u32 v2, s29, v2")
    for i in range(c.FM):
        for j in range(c.FN):
            d = c.vAcc + (i * c.FN + j) * 4
            a(f"ds_write_b128 v2, v[{d}:{d+3}] offset:{i*16*LS + j*64}")
    a("s_waitcnt lgkmcnt(0)")
    a.lab("k2_ldone")
    a("s_barrier")
    srd(a, 8, 34, 35, 256)
    a("s_lshr_b32 s24, s47, 5")
    a("s_lshr_b32 s25, s48, 7")
    a("s_add_u32 s24, s24, s25")
    a("s_lshl_b32 s36, s24, 2")
    srd_off(a, 12, 32, 33, WS_P, 4*2048*512*4)
    a("s_lshl_b32 s24, s47, 11")
    a("s_lshl_b32 s25, s48, 2")
    a("s_add_u32 s38, s24, s25")
    a("s_lshl_b32 s31, s46, 22")
    a("s_add_u32 s31, s31, s38")
    a("s_lshl_b32 s37, s46, 5")
    a("v_and_b32 v4, 31, v0")
    a("v_lshrrev_b32 v5, 5, v0")
    a("v_lshlrev_b32 v4, 4, v4")
    for i in range(6):
        a(f"v_add_u32 v6, {16*i}, v5")
        a("v_add_u32 v7, 32, v6")
        a("v_cmp_le_u32 vcc, s37, v6")
        a("s_nop 1")
        a("v_cndmask_b32 v6, v6, v7, vcc")
        a(f"v_mul_u32_u24 v7, {LS}, v6")
        a("v_add_u32 v7, v7, v4")
        a(f"ds_read_b128 v[{8+4*i}:{11+4*i}], v7")
        a(f"v_lshl_add_u32 v{48+i}, v6, 11, v4")
    for i in range(6):
        a(f"s_waitcnt lgkmcnt({5-i})")
        a(f"buffer_store_dwordx4 v[{8+4*i}:{11+4*i}], v{48+i}, s[12:15], s31 offen sc0 sc1")
    srd(a, 4, 40, 41, 2048*512*2)
    srd(a, 16, 42, 43, 512*2)
    srd(a, 20, 56, 57, 2048*512*2)
    a("s_lshr_b32 s39, s38, 1")
    a("v_lshrrev_b32 v6, 1, v4")
    a("s_lshl_b32 s30, s48, 1")
    a("v_add_u32 v6, s30, v6")
    a("buffer_load_dwordx2 v[60:61], v6, s[16:19], 0 offen")
    for i in range(2):
        a(f"v_add_u32 v6, s37, v5")
        if i:
            a("v_add_u32 v6, 16, v6")
        a(f"v_mul_u32_u24 v7, {LS}, v6")
        a("v_add_u32 v7, v7, v4")
        a(f"ds_read_b128 v[{64+4*i}:{67+4*i}], v7")
        a(f"v_lshl_add_u32 v{72+i}, v6, 11, v4")
        a(f"v_lshrrev_b32 v{74+i}, 1, v{72+i}")
        a(f"buffer_load_dwordx2 v[{76+2*i}:{77+2*i}], v{74+i}, s[4:7], s39 offen")
    a("s_waitcnt vmcnt(3)")
    a("s_barrier")
    a("v_cmp_eq_u32 vcc, 0, v0")
    a("s_and_saveexec_b64 s[24:25], vcc")
    a("s_cbranch_execz k2_pl2")
    a("v_mov_b32 v4, 1")
    a("v_mov_b32 v5, s36")
    a("buffer_atomic_add v4, v5, s[8:11], 0 offen sc1")
    a.lab("k2_poll")
    a("buffer_load_dword v4, v5, s[8:11], 0 offen sc0 sc1")
    a("s_waitcnt vmcnt(0)")
    a("s_nop 0")
    a("v_readfirstlane_b32 s30, v4")
    a("s_cmp_ge_u32 s30, 4")
    a("s_cbranch_scc1 k2_pl2")
    a("s_sleep 1")
    a("s_branch k2_poll")
    a.lab("k2_pl2")
    a("s_mov_b64 exec, s[24:25]")
    a("s_barrier")
    for k in range(1, 4):
        a(f"s_add_u32 s24, s46, {k}")
        a("s_and_b32 s24, s24, 3")
        a("s_lshl_b32 s24, s24, 22")
        a("s_add_u32 s24, s24, s38")
        for i in range(2):
            b = 80 + (k - 1) * 8 + 4 * i
            a(f"buffer_load_dwordx4 v[{b}:{b+3}], v{72+i}, s[12:15], s24 offen sc0 sc1")
    a("s_waitcnt vmcnt(6) lgkmcnt(0)")
    a("v_lshlrev_b32 v12, 16, v60")
    a("v_and_b32 v13, 0xffff0000, v60")
    a("v_lshlrev_b32 v14, 16, v61")
    a("v_and_b32 v15, 0xffff0000, v61")
    for i in range(2):
        b = 64 + 4 * i
        a(f"v_lshlrev_b32 v16, 16, v{76+2*i}")
        a(f"v_and_b32 v17, 0xffff0000, v{76+2*i}")
        a(f"v_lshlrev_b32 v18, 16, v{77+2*i}")
        a(f"v_and_b32 v19, 0xffff0000, v{77+2*i}")
        for e in range(4):
            a(f"v_add_f32 v{b+e}, v{b+e}, v{12+e}")
            a(f"v_add_f32 v{b+e}, v{b+e}, v{16+e}")
    a("s_waitcnt vmcnt(0)")
    for i in range(2):
        b = 64 + 4 * i
        for k in range(3):
            for e in range(4):
                a(f"v_add_f32 v{b+e}, v{b+e}, v{80+8*k+4*i+e}")
        a(f"v_cvt_pk_bf16_f32 v{20+2*i}, v{b}, v{b+1}")
        a(f"v_cvt_pk_bf16_f32 v{21+2*i}, v{b+2}, v{b+3}")
        a(f"buffer_store_dwordx2 v[{20+2*i}:{21+2*i}], v{74+i}, s[20:23], s39 offen")
    a.lab("L_k2_end")
    if os.environ.get("RT"):
        a("s_cmp_ge_u32 s2, 256")
        a("s_cbranch_scc1 L_k2_end2")
        rt_end(a, 1)
        a.lab("L_k2_end2")
    a("s_endpgm")
    return kernel_desc(name, c.nvgpr, 96), c.lds()

def gen_k3(a, name):
    kernel_header(a, name)
    a("s_cmp_ge_u32 s2, 512")
    a("s_cbranch_scc1 L_k3_end")
    a(f"s_load_dwordx2 s[4:5], s[0:1], {KA_X}")
    a(f"s_load_dwordx2 s[6:7], s[0:1], {KA_B2}")
    a(f"s_load_dwordx2 s[24:25], s[0:1], {KA_OUT}")
    a(f"s_load_dwordx2 s[26:27], s[0:1], {KA_WS}")
    a("s_lshl_b32 s3, s2, 8")
    a("v_add_u32 v1, s3, v0")
    a("v_lshlrev_b32 v2, 4, v1")
    a("v_lshlrev_b32 v3, 5, v1")
    a("v_and_b32 v4, 63, v1")
    a("v_lshlrev_b32 v4, 4, v4")
    a("s_waitcnt lgkmcnt(0)")
    srd(a, 8, 4, 5, 2048*512*2)
    srd(a, 12, 6, 7, 512*2)
    srd(a, 16, 24, 25, 2048*512*2)
    srd_off(a, 20, 26, 27, WS_P, NSPLIT*2048*512*4)
    a("buffer_load_dwordx4 v[8:11], v2, s[8:11], 0 offen")
    a("buffer_load_dwordx4 v[12:15], v4, s[12:15], 0 offen")
    for s in range(NSPLIT):
        a(f"s_mov_b32 s28, {s << 22}")
        a(f"buffer_load_dwordx4 v[{16+8*s}:{19+8*s}], v3, s[20:23], s28 offen")
        a(f"buffer_load_dwordx4 v[{20+8*s}:{23+8*s}], v3, s[20:23], s28 offen offset:16")
    a("s_waitcnt vmcnt(0)")
    for s in range(1, NSPLIT):
        for e in range(8):
            a(f"v_add_f32 v{16+e}, v{16+e}, v{16+8*s+e}")
    for i in range(4):
        a(f"v_lshlrev_b32 v5, 16, v{8+i}")
        a(f"v_and_b32 v6, 0xffff0000, v{8+i}")
        a(f"v_add_f32 v{16+2*i}, v{16+2*i}, v5")
        a(f"v_add_f32 v{17+2*i}, v{17+2*i}, v6")
        a(f"v_lshlrev_b32 v5, 16, v{12+i}")
        a(f"v_and_b32 v6, 0xffff0000, v{12+i}")
        a(f"v_add_f32 v{16+2*i}, v{16+2*i}, v5")
        a(f"v_add_f32 v{17+2*i}, v{17+2*i}, v6")
    for i in range(4):
        a(f"v_cvt_pk_bf16_f32 v{8+i}, v{16+2*i}, v{17+2*i}")
    a("buffer_store_dwordx4 v[8:11], v2, s[16:19], 0 offen")
    a.lab("L_k3_end")
    a("s_endpgm")
    return kernel_desc(name, 16 + 8 * NSPLIT, 32)

def main():
    hdr = open("cdna_kernels/" + KN + ".s.ref").read().split("; Override launch geometry")[0]
    descs = []
    body = Asm()
    body.raw('.amdgcn_target "amdgcn-amd-amdhsa--gfx950"')
    body.raw(".text")
    d, lds1 = gen_k1(body, "gemm1_kernel"); descs.append(d)
    d, lds2 = gen_k2(body, "gemm2_kernel"); descs.append(d)
    out = hdr
    out += f"; @launch kernel=gemm1_kernel grid=(256,1,1) block=(512,1,1) lds={lds1}\n"
    out += f"; @launch kernel=gemm2_kernel grid=(256,1,1) block=({576 if PFW else 512},1,1) lds={lds2}\n"
    out += body.text()
    out += '.section .rodata,"a"\n' + "".join(descs)
    dst = sys.argv[1] if len(sys.argv) > 1 else "cdna_kernels/" + KN + ".s"
    open(dst, "w").write(out)

main()
```

```python
import sys, os

KN = "parallel_sum__spectral_fnet__dense_activation_squared_relu__prompt"
KA_X, KA_CR, KA_CI, KA_DR, KA_DI, KA_BX, KA_W1, KA_B1, KA_W2, KA_B2, KA_OUT, KA_DBG, KA_WS = [8*i for i in range(13)]
WS_XN = 0
WS_BT = 2 << 20
BT_STRIDE = 5888 * 2
WS_H = 8 << 20
WS_P = 16 << 20
NSPLIT = 4
ROT2 = int(os.environ.get('ROT2', '2'))
STAMP = os.environ.get("STAMP")
ILV = int(os.environ.get('ILV', '1'))
PFW = int(os.environ.get('PFW', '0'))
ROTN = int(os.environ.get('ROTN', '0'))

class Asm:
    def __init__(s):
        s.l = []
    def __call__(s, t):
        s.l.append("    " + t)
    def lab(s, t):
        s.l.append(t + ":")
    def raw(s, t):
        s.l.append(t)
    def text(s):
        return "\n".join(s.l) + "\n"

def srd(a, d, lo, hi, nbytes):
    a(f"s_mov_b32 s{d}, s{lo}")
    a(f"s_and_b32 s{d+1}, s{hi}, 0xffff")
    a(f"s_mov_b32 s{d+2}, {nbytes}")
    a(f"s_mov_b32 s{d+3}, 0x00020000")

def srd_off(a, d, lo, hi, off, nbytes):
    a(f"s_add_u32 s{d}, s{lo}, {off}")
    a(f"s_addc_u32 s{d+1}, s{hi}, 0")
    a(f"s_and_b32 s{d+1}, s{d+1}, 0xffff")
    a(f"s_mov_b32 s{d+2}, {nbytes}")
    a(f"s_mov_b32 s{d+3}, 0x00020000")

def kernel_header(a, name):
    a.raw(f".globl {name}")
    a.raw(".p2align 8")
    a.raw(f".type {name},@function")
    a.lab(name)

def kernel_desc(name, vgpr, sgpr=102, accum=None):
    if accum is None:
        accum = (vgpr + 3) // 4 * 4
    return f""".p2align 6
.amdhsa_kernel {name}
  .amdhsa_next_free_vgpr {vgpr}
  .amdhsa_next_free_sgpr {sgpr}
  .amdhsa_accum_offset {accum}
  .amdhsa_group_segment_fixed_size 0
  .amdhsa_kernarg_size 104
  .amdhsa_user_sgpr_count 2
  .amdhsa_user_sgpr_kernarg_segment_ptr 1
  .amdhsa_system_sgpr_workgroup_id_x 1
.end_amdhsa_kernel
"""

def stamp(a, idx):
    if not STAMP: return
    a(f"s_memtime s[{60+2*idx}:{61+2*idx}]")
def rt_start(a):
    if not os.environ.get("RT"): return
    a("s_memrealtime s[76:77]")
def rt_end(a, kidx):
    if not os.environ.get("RT"): return
    k = rt_end.n; rt_end.n += 1
    a("s_waitcnt vmcnt(0) lgkmcnt(0)")
    a("s_memrealtime s[78:79]")
    a(f"s_load_dwordx2 s[56:57], s[0:1], {KA_WS}")
    a("s_waitcnt lgkmcnt(0)")
    srd_off(a, 52, 56, 57, (64 << 20) + kidx * 65536, 65536)
    a("v_cmp_eq_u32 vcc, 0, v0")
    a("s_and_saveexec_b64 s[58:59], vcc")
    a(f"s_cbranch_execz L_rt_skip{k}")
    a("s_lshl_b32 s56, s2, 4")
    a("v_mov_b32 v2, s56")
    a("v_mov_b32 v4, s76")
    a("v_mov_b32 v5, s77")
    a("v_mov_b32 v6, s78")
    a("v_mov_b32 v7, s79")
    a("buffer_store_dwordx4 v[4:7], v2, s[52:55], 0 offen")
    a("s_waitcnt vmcnt(0)")
    a.lab(f"L_rt_skip{k}")
rt_end.n = 0
def stamp_flush(a, n, wgsel):
    if not STAMP: return
    k = stamp_flush.n; stamp_flush.n += 1
    a("s_waitcnt vmcnt(0) lgkmcnt(0)")
    a(f"s_cmp_lg_u32 s2, {wgsel}")
    a(f"s_cbranch_scc1 L_st_skip{k}")
    a(f"s_load_dwordx2 s[56:57], s[0:1], {KA_DBG}")
    a("s_waitcnt lgkmcnt(0)")
    srd(a, 52, 56, 57, 256)
    a("v_cmp_eq_u32 vcc, 0, v0")
    a("s_and_saveexec_b64 s[58:59], vcc")
    a(f"s_cbranch_execz L_st_skip{k}")
    a("v_mov_b32 v2, 0")
    for i in range(n):
        a(f"s_sub_u32 s56, s{60+2*i}, s60")
        a("v_mov_b32 v3, s56")
        a(f"buffer_store_dword v3, v2, s[52:55], 0 offen offset:{4*i}")
    a("s_waitcnt vmcnt(0)")
    a.lab(f"L_st_skip{k}")
stamp_flush.n = 0

def wave_sum(a, v, t, vp32):
    for x in (1, 2, 4, 8, 16):
        a(f"ds_swizzle_b32 v{t}, v{v} offset:{(x << 10) | 0x1f}")
        a("s_waitcnt lgkmcnt(0)")
        a(f"v_add_f32 v{v}, v{v}, v{t}")
    a(f"ds_bpermute_b32 v{t}, v{vp32}, v{v}")
    a("s_waitcnt lgkmcnt(0)")
    a(f"v_add_f32 v{v}, v{v}, v{t}")

def round_bf16(a, d, s):
    a(f"v_cvt_pk_bf16_f32 v{d}, v{s}, v{s}")
    a(f"v_lshlrev_b32 v{d}, 16, v{d}")

def gen_ln(a, name):
    kernel_header(a, name)
    a("s_cmp_ge_u32 s2, 512")
    a("s_cbranch_scc1 L_ln_done")
    a(f"s_load_dwordx2 s[4:5], s[0:1], {KA_X}")
    a(f"s_load_dwordx2 s[6:7], s[0:1], {KA_WS}")
    a("v_and_b32 v1, 63, v0")
    a("v_lshrrev_b32 v2, 6, v0")
    a("s_lshl_b32 s3, s2, 2")
    a("v_add_u32 v2, s3, v2")
    a("v_lshlrev_b32 v2, 10, v2")
    a("v_lshl_add_u32 v2, v1, 4, v2")
    a("v_xor_b32 v3, 32, v1")
    a("v_lshlrev_b32 v3, 2, v3")
    a("s_waitcnt lgkmcnt(0)")
    srd(a, 8, 4, 5, 2048*512*2)
    srd_off(a, 12, 6, 7, WS_XN, 2048*512*2)
    a("buffer_load_dwordx4 v[4:7], v2, s[8:11], 0 offen")
    a("s_waitcnt vmcnt(0)")
    for i in range(4):
        a(f"v_lshlrev_b32 v{10+2*i}, 16, v{4+i}")
        a(f"v_and_b32 v{11+2*i}, 0xffff0000, v{4+i}")
    a("v_add_f32 v20, v10, v11")
    for i in range(2, 8):
        a(f"v_add_f32 v20, v20, v{10+i}")
    wave_sum(a, 20, 21, 3)
    a("v_mul_f32 v20, 0x3b000000, v20")
    a("v_mov_b32 v22, 0")
    for i in range(8):
        a(f"v_sub_f32 v23, v{10+i}, v20")
        a("v_fmac_f32 v22, v23, v23")
    wave_sum(a, 22, 21, 3)
    a("v_mul_f32 v22, 0x3b000000, v22")
    round_bf16(a, 20, 20)
    round_bf16(a, 22, 22)
    a("v_add_f32 v22, 0x3727c5ac, v22")
    round_bf16(a, 22, 22)
    a("v_sqrt_f32 v22, v22")
    a("s_nop 0")
    round_bf16(a, 22, 22)
    a("v_rcp_f32 v22, v22")
    a("s_nop 0")
    for i in range(8):
        a(f"v_sub_f32 v{10+i}, v{10+i}, v20")
    for i in range(4):
        a(f"v_cvt_pk_bf16_f32 v{4+i}, v{10+2*i}, v{11+2*i}")
    for i in range(4):
        a(f"v_lshlrev_b32 v{10+2*i}, 16, v{4+i}")
        a(f"v_and_b32 v{11+2*i}, 0xffff0000, v{4+i}")
    for i in range(8):
        a(f"v_mul_f32 v{10+i}, v{10+i}, v22")
    for i in range(4):
        a(f"v_cvt_pk_bf16_f32 v{4+i}, v{10+2*i}, v{11+2*i}")
    a("buffer_store_dwordx4 v[4:7], v2, s[12:15], 0 offen")
    a.lab("L_ln_done")
    a("s_endpgm")
    return kernel_desc(name, 32, 32)

class GemmCfg:
    def __init__(s, pfx, BM, BN, NST, btn=False, a_stride=1024, b_stride=1024, swap=False, segA=False, stats=False):
        s.stats = stats
        s.pfx = pfx; s.BM = BM; s.BN = BN; s.NST = NST; s.btn = btn
        s.a_stride = a_stride; s.b_stride = b_stride; s.swap = swap; s.segA = segA
        s.WM = 2; s.WN = 2; s.NW = 4
        s.FM = BM // s.WM // 16; s.FN = BN // s.WN // 16
        s.A_bytes = BM * 128
        s.RB = BN * 2
        s.B_bytes = 64 * s.RB if btn else BN * 128
        s.stage = s.A_bytes + s.B_bytes
        s.GA = BM // 8 // s.NW
        s.GB = s.B_bytes // 1024 // s.NW
        assert s.B_bytes % (1024 * s.NW) == 0
        s.L = s.GA + s.GB
        p = 4
        s.vAoff = p
        s.vBoff = p + s.GA
        s.vRd = p; p += 4 * NST
        p = max(p, 4 + s.L)
        p = (p + 3) // 4 * 4
        s.vFA = p; p += 2 * s.FM * 4
        s.vFB = p; p += 2 * s.FN * 4
        s.vAcc = p; p += s.FM * s.FN * 4
        s.vTmp = p; p += 8
        if stats:
            s.vCS = p; p += 4 * s.FN
            s.vOne = p; p += 4
            s.vTch = 124; s.vDum = 128
            if not btn:
                p = (p + 1) // 2 * 2
                s.vPfD = p; p += 4
                s.vPfA = p; p += 1
        else:
            p += 4
            s.vTch = p
            s.vDum = p
        s.PD = int(os.environ.get("PD", "6"))
        s.nvgpr = p
        assert p <= 256, p
        s.L_M = s.stage * NST
        s.L_R = s.L_M + 512
        s.L_CS = s.L_R + 512
    def lds(s):
        return s.stage * s.NST + (2048 if s.stats else 0)

def loader_setup(a, c, sArow, sBrow):
    T = c.vTmp
    a("v_lshrrev_b32 v2, 3, v1")
    a("v_and_b32 v3, 7, v1")
    if not os.environ.get("NOSWZ"):
        a("v_xor_b32 v3, v3, v2")
    a("v_lshlrev_b32 v3, 4, v3")
    a(f"s_mul_i32 s24, s16, {c.GA*8}")
    a(f"s_add_u32 s24, s24, s{sArow}")
    a(f"v_add_u32 v{T}, s24, v2")
    a(f"s_mov_b32 s25, {c.a_stride}")
    a(f"v_mul_lo_u32 v{T}, v{T}, s25")
    a(f"v_add_u32 v{T}, v{T}, v3")
    for i in range(c.GA):
        a(f"v_add_u32 v{c.vAoff+i}, {i*8*c.a_stride - (i % 4)*1024}, v{T}")
    if not c.btn:
        a(f"s_mul_i32 s24, s16, {c.GB*8}")
        a(f"s_add_u32 s24, s24, s{sBrow}")
        a(f"v_add_u32 v{T}, s24, v2")
        a(f"s_mov_b32 s25, {c.b_stride}")
        a(f"v_mul_lo_u32 v{T}, v{T}, s25")
        a(f"v_add_u32 v{T}, v{T}, v3")
        for i in range(c.GB):
            a(f"v_add_u32 v{c.vBoff+i}, {i*8*c.b_stride - (i % 4)*1024}, v{T}")
    else:
        assert c.RB == 448
        a(f"s_mul_i32 s24, s16, {c.GB*64}")
        a(f"s_lshl_b32 s25, s{sBrow}, 1")
        for i in range(c.GB):
            a(f"v_add_u32 v{T}, s24, v1")
            if i:
                a(f"v_add_u32 v{T}, {i*64}, v{T}")
            a(f"v_mul_u32_u24 v{T+1}, 2341, v{T}")
            a(f"v_lshrrev_b32 v{T+1}, 16, v{T+1}")
            a(f"v_mul_u32_u24 v{T+2}, 28, v{T+1}")
            a(f"v_sub_u32 v{T+2}, v{T}, v{T+2}")
            a(f"v_lshrrev_b32 v{T+3}, 2, v{T+1}")
            a(f"v_and_b32 v{T+3}, 2, v{T+3}")
            a(f"v_xor_b32 v{T+2}, v{T+2}, v{T+3}")
            a(f"v_lshlrev_b32 v{T+2}, 4, v{T+2}")
            a(f"v_mul_u32_u24 v{T+1}, {c.b_stride}, v{T+1}")
            a(f"v_add3_u32 v{c.vBoff+i}, v{T+1}, v{T+2}, s25")
            if i % 4:
                a(f"v_subrev_u32 v{c.vBoff+i}, {(i % 4)*1024}, v{c.vBoff+i}")
    a(f"s_mul_i32 s22, s16, {c.GA*1024}")
    a(f"s_mul_i32 s23, s16, {c.GB*1024}")
    a(f"s_add_u32 s23, s23, {c.A_bytes}")

def compute_setup(a, c):
    T = c.vTmp
    a("s_lshr_b32 s24, s16, 1")
    a("s_and_b32 s25, s16, 1")
    a("v_and_b32 v2, 15, v1")
    a("v_lshrrev_b32 v3, 4, v1")
    a(f"v_and_b32 v{T}, 7, v1")
    a(f"v_xor_b32 v{T}, v{T}, v3")
    a(f"v_lshlrev_b32 v{T}, 4, v{T}")
    a(f"s_mul_i32 s12, s24, {c.BM//c.WM*128}")
    a(f"v_lshl_add_u32 v{T+1}, v2, 7, v{T}")
    a(f"v_add_u32 v{T+1}, s12, v{T+1}")
    for s in range(c.NST):
        a(f"v_add_u32 v{c.vRd+4*s}, {s*c.stage}, v{T+1}")
        a(f"v_xor_b32 v{c.vRd+4*s+1}, 64, v{c.vRd+4*s}")
    if not c.btn:
        a(f"s_mul_i32 s12, s25, {c.BN//c.WN*128}")
        a(f"s_add_u32 s12, s12, {c.A_bytes}")
        a(f"v_lshl_add_u32 v{T+1}, v2, 7, v{T}")
        a(f"v_add_u32 v{T+1}, s12, v{T+1}")
        for s in range(c.NST):
            a(f"v_add_u32 v{c.vRd+4*s+2}, {s*c.stage}, v{T+1}")
            a(f"v_xor_b32 v{c.vRd+4*s+3}, 64, v{c.vRd+4*s+2}")
    else:
        a(f"v_lshrrev_b32 v{T}, 2, v2")
        a(f"v_lshl_add_u32 v{T}, v3, 3, v{T}")
        a(f"v_mul_u32_u24 v{T}, {c.RB}, v{T}")
        a(f"v_and_b32 v{T+1}, 3, v2")
        a(f"v_lshl_add_u32 v{T}, v{T+1}, 3, v{T}")
        a(f"s_mul_i32 s12, s25, {c.FN*32}")
        a(f"s_add_u32 s12, s12, {c.A_bytes}")
        a(f"v_add_u32 v{T}, s12, v{T}")
        a(f"v_and_b32 v{T+1}, 1, v3")
        a(f"v_lshlrev_b32 v{T+1}, 5, v{T+1}")
        a(f"s_mul_i32 s12, s25, {c.FN}")
        a("s_and_b32 s12, s12, 1")
        a("s_lshl_b32 s12, s12, 1")
        a("s_sub_u32 s12, 1, s12")
        a(f"v_mul_lo_u32 v{T+1}, v{T+1}, s12")
        a(f"v_add_u32 v{T+2}, v{T}, v{T+1}")
        a(f"v_sub_u32 v{T+3}, v{T}, v{T+1}")
        for s in range(c.NST):
            a(f"v_add_u32 v{c.vRd+4*s+2}, {s*c.stage}, v{T+2}")
            a(f"v_add_u32 v{c.vRd+4*s+3}, {s*c.stage}, v{T+3}")
    for i in range(c.FM * c.FN * 4):
        a(f"v_mov_b32 v{c.vAcc+i}, 0")
    if c.stats:
        for i in range(4 * c.FN):
            a(f"v_mov_b32 v{c.vCS+i}, 0")
        for i in range(4):
            a(f"v_mov_b32 v{c.vOne+i}, 0x3f803f80")

def step_prep(a, c):
    a("s_add_u32 s25, s19, s49")
    a("s_cmp_ge_u32 s25, s54")
    a("s_cselect_b32 s24, s51, 0")
    a("s_sub_u32 s25, s25, s24")
    if c.segA and ILV:
        a("s_lshl_b32 s25, s25, 2")
        a("s_add_u32 s25, s25, s46")
    if c.segA:
        a("s_lshr_b32 s24, s25, 5")
        a("s_and_b32 s20, s25, 31")
        a("s_lshl_b32 s20, s20, 7")
        a("s_cmp_eq_u32 s24, 0")
        a("s_cselect_b64 s[4:5], s[26:27], s[28:29]")
        a("s_cmp_eq_u32 s24, 2")
        a("s_cselect_b64 s[4:5], s[30:31], s[4:5]")
    else:
        a("s_lshl_b32 s20, s25, 7")
    if c.btn:
        a(f"s_mul_i32 s21, s25, {64*c.b_stride}")
    else:
        a("s_lshl_b32 s21, s25, 7")
    a("s_add_u32 s19, s19, 1")

def touch_setup(a, c, sArow, sBrow):
    T = c.vTmp
    a(f"v_and_b32 v{T}, 31, v1")
    a(f"s_mul_i32 s24, s16, {c.BM//4}")
    a(f"s_add_u32 s24, s24, s{sArow}")
    a(f"v_add_u32 v{T+1}, s24, v{T}")
    a(f"s_mov_b32 s25, {c.a_stride}")
    a(f"v_mul_lo_u32 v{c.vTch}, v{T+1}, s25")
    if not c.btn:
        a(f"s_mul_i32 s24, s16, {c.BN//4}")
        a(f"s_add_u32 s24, s24, s{sBrow}")
        a(f"v_add_u32 v{T+1}, s24, v{T}")
        a(f"s_mov_b32 s25, {c.b_stride}")
        a(f"v_mul_lo_u32 v{c.vTch+1}, v{T+1}, s25")
    else:
        a(f"v_and_b32 v{T}, 15, v1")
        a("s_lshl_b32 s24, s16, 4")
        a(f"v_add_u32 v{T}, s24, v{T}")
        a(f"v_mul_u32_u24 v{T}, {c.b_stride}, v{T}")
        a(f"s_lshl_b32 s25, s{sBrow}, 1")
        a(f"v_add_u32 v{T}, s25, v{T}")
        a(f"v_lshrrev_b32 v{T+1}, 4, v1")
        a(f"v_lshl_add_u32 v{c.vTch+1}, v{T+1}, 7, v{T}")
        a(f"v_add_u32 v{c.vTch+2}, {c.RB-4}, v{T}")

def touch_issue(a, c):
    step_prep(a, c)
    a(f"buffer_load_dword v{c.vTch+3}, v{c.vTch}, s[4:7], s20 offen")
    a(f"buffer_load_dword v{c.vTch+3}, v{c.vTch+1}, s[8:11], s21 offen")
    if c.btn:
        a(f"buffer_load_dword v{c.vTch+3}, v{c.vTch+2}, s[8:11], s21 offen")

def panel_prefetch(a, c, sArow):
    P = c.pfx
    D = c.vDum
    a("s_lshr_b32 s24, s48, 2")
    a("s_lshl_b32 s25, s16, 3")
    a("s_add_u32 s24, s24, s25")
    a(f"s_add_u32 s24, s24, s{sArow}")
    a("s_lshl_b32 s24, s24, 12")
    a(f"v_lshl_add_u32 v{c.vTch}, v1, 4, s24")
    a("s_lshr_b32 s20, s17, 3")
    a("s_sub_u32 s21, s18, 1")
    a("s_lshr_b32 s21, s21, 3")
    a.lab(f"{P}_pf")
    a("s_lshr_b32 s24, s20, 2")
    a("s_cmp_eq_u32 s24, 0")
    a("s_cselect_b64 s[4:5], s[26:27], s[28:29]")
    a("s_cmp_eq_u32 s24, 2")
    a("s_cselect_b64 s[4:5], s[30:31], s[4:5]")
    a("s_and_b32 s25, s20, 3")
    a("s_lshl_b32 s25, s25, 10")
    for r in range(8):
        a(f"buffer_load_dwordx4 v[{D}:{D+3}], v{c.vTch}, s[4:7], s25 offen")
        if r < 7:
            a("s_add_u32 s25, s25, 4096")
    a("s_add_u32 s20, s20, 1")
    a("s_cmp_le_u32 s20, s21")
    a(f"s_cbranch_scc1 {P}_pf")

SB = 32
def stats_setup(a, c):
    a("v_lshrrev_b32 v2, 1, v1")
    a("s_lshl_b32 s24, s16, 5")
    a("v_add_u32 v2, s24, v2")
    a("v_and_b32 v3, 1, v1")
    a("v_lshlrev_b32 v3, 6, v3")
    a("v_lshl_add_u32 v3, v2, 7, v3")
    a("v_lshrrev_b32 v2, 1, v2")
    for k in range(4):
        a(f"v_add_u32 v{SB+8}, {k}, v2")
        a(f"v_and_b32 v{SB+8}, 3, v{SB+8}")
        a(f"v_lshl_add_u32 v{SB+k}, v{SB+8}, 4, v3")
    for k in range(8, 12):
        a(f"v_mov_b32 v{SB+k}, 0")
    a(f"v_mov_b32 v{SB+14}, 0x3f803f80")
    a("s_mov_b32 s55, 0")

def stats_stage(a, c):
    Bf = 64
    for k in range(4):
        a(f"v_add_u32 v{Bf+48+k}, s55, v{SB+k}")
        a(f"ds_read_b128 v[{Bf+4*k}:{Bf+4*k+3}], v{Bf+48+k}")
    for k in range(16):
        if k % 4 == 0:
            a(f"s_waitcnt lgkmcnt({3-k//4})")
        a(f"v_dot2_f32_bf16 v{SB+8+(k&1)}, v{Bf+k}, v{SB+14}, v{SB+8+(k&1)}")
        a(f"v_dot2_f32_bf16 v{SB+10+(k&1)}, v{Bf+k}, v{Bf+k}, v{SB+10+(k&1)}")
    a(f"s_add_u32 s55, s55, {c.stage}")
    a(f"s_cmp_ge_u32 s55, {c.stage*c.NST}")
    a("s_cselect_b32 s55, 0, s55")

def stats_final(a, c):
    S, Q = SB + 8, SB + 10
    a("s_nop 3")
    a(f"v_add_f32 v{S}, v{S}, v{S+1}")
    a(f"v_add_f32 v{Q}, v{Q}, v{Q+1}")
    a("s_nop 1")
    a(f"v_add_f32_dpp v{S}, v{S}, v{S} quad_perm:[1,0,3,2] row_mask:0xf bank_mask:0xf")
    a(f"v_add_f32_dpp v{Q}, v{Q}, v{Q} quad_perm:[1,0,3,2] row_mask:0xf bank_mask:0xf")
    a(f"v_mul_f32 v{S}, 0x3b000000, v{S}")
    a(f"v_mul_f32 v{Q}, 0x3b000000, v{Q}")
    a(f"v_fma_f32 v{Q}, -v{S}, v{S}, v{Q}")
    a(f"v_max_f32 v{Q}, 0, v{Q}")
    round_bf16(a, S, S)
    round_bf16(a, Q, Q)
    a(f"v_add_f32 v{Q}, 0x3727c5ac, v{Q}")
    round_bf16(a, Q, Q)
    a(f"v_sqrt_f32 v{Q}, v{Q}")
    a("s_nop 0")
    round_bf16(a, Q, Q)
    a(f"v_rcp_f32 v{Q}, v{Q}")
    a("v_lshrrev_b32 v2, 1, v1")
    a("s_lshl_b32 s24, s16, 5")
    a("v_add_u32 v2, s24, v2")
    a("v_lshlrev_b32 v2, 2, v2")
    a(f"v_add_u32 v2, {c.L_M}, v2")
    a(f"ds_write_b32 v2, v{S}")
    a(f"ds_write_b32 v2, v{Q} offset:512")
    a("s_waitcnt lgkmcnt(0)")

def loader_issue(a, c):
    step_prep(a, c)
    a("s_add_u32 s24, s22, s52")
    for i in range(c.GA):
        if i % 4 == 0:
            a(f"s_add_u32 m0, s24, {(i//4)*4096}")
            a("s_nop 0")
        off = (i % 4) * 1024
        if not os.environ.get("NODMA"):
            a(f"buffer_load_dwordx4 v{c.vAoff+i}, s[4:7], s20 offen" + (f" offset:{off}" if off else "") + " lds")
    a("s_add_u32 s24, s23, s52")
    for i in range(c.GB):
        if i % 4 == 0:
            a(f"s_add_u32 m0, s24, {(i//4)*4096}")
            a("s_nop 0")
        off = (i % 4) * 1024
        if not os.environ.get("NODMA"):
            a(f"buffer_load_dwordx4 v{c.vBoff+i}, s[8:11], s21 offen" + (f" offset:{off}" if off else "") + " lds")
    a(f"s_add_u32 s52, s52, {c.stage}")
    a(f"s_cmp_ge_u32 s52, {c.stage*c.NST}")
    a("s_cselect_b32 s52, 0, s52")

def frag_reads(c, slot, kk):
    r = []
    if os.environ.get("NODSR"):
        return []
    for i in range(c.FM):
        d = c.vFA + (kk * c.FM + i) * 4
        r.append(f"ds_read_b128 v[{d}:{d+3}], v{c.vRd+4*slot+kk} offset:{i*2048}")
    for j in range(c.FN):
        d = c.vFB + (kk * c.FN + j) * 4
        if not c.btn:
            r.append(f"ds_read_b128 v[{d}:{d+3}], v{c.vRd+4*slot+2+kk} offset:{j*2048}")
        else:
            base = c.vRd + 4 * slot + 2 + (j & 1)
            o = j * 32 + kk * 32 * c.RB
            r.append(f"ds_read_b64_tr_b16 v[{d}:{d+1}], v{base} offset:{o}")
            r.append(f"ds_read_b64_tr_b16 v[{d+2}:{d+3}], v{base} offset:{o + 4*c.RB}")
    return r

def mfmas(c, kk):
    r = []
    if os.environ.get("NOMFMA"):
        return ["s_nop 0"] * (c.FM * c.FN)
    for i in range(c.FM):
        for j in range(c.FN):
            fa = c.vFA + (kk * c.FM + i) * 4
            fb = c.vFB + (kk * c.FN + j) * 4
            d = c.vAcc + (i * c.FN + j) * 4
            x, y = (fb, fa) if c.swap else (fa, fb)
            r.append(f"v_mfma_f32_16x16x32_bf16 v[{d}:{d+3}], v[{x}:{x+3}], v[{y}:{y+3}], v[{d}:{d+3}]")
    if c.stats:
        for j in range(c.FN):
            fb = c.vFB + (kk * c.FN + j) * 4
            d = c.vCS + 4 * j
            x, y = (fb, c.vOne) if c.swap else (c.vOne, fb)
            r.append(f"v_mfma_f32_16x16x32_bf16 v[{d}:{d+3}], v[{x}:{x+3}], v[{y}:{y+3}], v[{d}:{d+3}]")
    return r

def interleave(a, mf, reads):
    n = len(mf)
    slots = [[] for _ in range(n)]
    for i, r in enumerate(reads):
        slots[min(n - 1, i * (n - 3) // max(1, len(reads)))].append(r)
    for i in range(n):
        a(mf[i])
        for x in slots[i]:
            a(x)

def gemm(a, c, sArow, sBrow):
    P = c.pfx; N = c.NST
    a("s_mov_b32 s54, s18")
    if c.segA and PFW:
        a("s_cmp_eq_u32 s53, 2")
        a(f"s_cbranch_scc1 {P}_pfw")
    a("s_cmp_lg_u32 s53, 0")
    a(f"s_cbranch_scc1 {P}_loader")
    if c.segA and os.environ.get("PF2"):
        panel_prefetch(a, c, sArow)
    PFD = (P == "k1d" and not os.environ.get("NOPF"))
    def pf4():
        if not PFD: return
        for r in range(4):
            a(f"buffer_load_dwordx4 v[{c.vPfD}:{c.vPfD+3}], v{c.vPfA}, s[12:15], s58 offen" + (f" offset:{r*1024}" if r else ""))
        a("s_add_u32 s58, s58, 4096")
    if PFD:
        a("s_lshl_b32 s24, s44, 3")
        a("s_add_u32 s24, s24, s45")
        a("s_cmp_lt_u32 s24, 64")
        a("s_cselect_b64 s[20:21], s[26:27], s[28:29]")
        a("s_and_b32 s24, s24, 63")
        a("s_lshl_b32 s24, s24, 17")
        a("s_lshl_b32 s25, s16, 15")
        a("s_add_u32 s58, s24, s25")
    if os.environ.get("PRIO"):
        a(f"s_setprio {os.environ['PRIO']}")
    compute_setup(a, c)
    if PFD:
        srd(a, 12, 20, 21, 2048*4096)
        a(f"v_lshlrev_b32 v{c.vPfA}, 4, v1")
    a("s_barrier")
    pf4()
    for x in frag_reads(c, 0, 0):
        a(x)
    a("s_waitcnt lgkmcnt(0)")
    interleave(a, mfmas(c, 0), frag_reads(c, 0, 1))
    a("s_waitcnt lgkmcnt(0)")
    a("s_barrier")
    a("s_sub_u32 s18, s18, 1")
    a.lab(f"{P}_cloop")
    for s in range(N):
        nx = (s + 1) % N
        pf4()
        interleave(a, mfmas(c, 1), frag_reads(c, nx, 0))
        a("s_waitcnt lgkmcnt(0)")
        interleave(a, mfmas(c, 0), frag_reads(c, nx, 1))
        a("s_waitcnt lgkmcnt(0)")
        a("s_barrier")
        a("s_add_u32 s17, s17, 1")
        a("s_cmp_ge_u32 s17, s18")
        a(f"s_cbranch_scc1 {P}_cfin")
    a(f"s_branch {P}_cloop")
    a.lab(f"{P}_cfin")
    for x in mfmas(c, 1):
        a(x)
    if c.stats:
        a("s_barrier")
    a("s_nop 7")
    a("s_nop 7")
    a(f"s_branch {P}_cdone")
    a.lab(f"{P}_loader")
    loader_setup(a, c, sArow, sBrow)
    if c.stats:
        stats_setup(a, c)
    if c.btn:
        a("s_cmp_lg_u32 s16, 0")
        a(f"s_cbranch_scc1 {P}_nb")
        srd(a, 12, 40, 41, 1792*2)
        a("v_min_u32 v2, 55, v1")
        a("v_lshlrev_b32 v3, 3, v2")
        a(f"s_lshl_b32 s24, s{sBrow}, 1")
        a("v_add_u32 v3, s24, v3")
        a("buffer_load_dwordx2 v[20:21], v3, s[12:15], 0 offen")
        a("v_lshlrev_b32 v22, 4, v2")
        a(f"v_add_u32 v22, {c.L_CS}, v22")
        a.lab(f"{P}_nb")
    a("s_mov_b32 s52, 0")
    for s in range(N):
        loader_issue(a, c)
    a(f"s_waitcnt vmcnt({c.L*(N-1)})")
    if c.btn:
        a("s_cmp_lg_u32 s16, 0")
        a(f"s_cbranch_scc1 {P}_nb2")
        a("v_lshlrev_b32 v24, 16, v20")
        a("v_and_b32 v25, 0xffff0000, v20")
        a("v_lshlrev_b32 v26, 16, v21")
        a("v_and_b32 v27, 0xffff0000, v21")
        a("ds_write_b128 v22, v[24:27]")
        a("s_waitcnt lgkmcnt(0)")
        a.lab(f"{P}_nb2")
    a("s_barrier")
    if c.stats:
        stats_stage(a, c)
    a(f"s_waitcnt vmcnt({c.L*(N-2)})")
    a("s_barrier")
    a("s_sub_u32 s50, s18, 1")
    a.lab(f"{P}_lloop")
    a("s_cmp_ge_u32 s19, s18")
    a(f"s_cbranch_scc1 {P}_lnd")
    loader_issue(a, c)
    if c.stats:
        stats_stage(a, c)
    a(f"s_waitcnt vmcnt({c.L*(N-2)})")
    a(f"s_branch {P}_lbar")
    a.lab(f"{P}_lnd")
    if c.stats:
        stats_stage(a, c)
    a("s_waitcnt vmcnt(0)")
    a.lab(f"{P}_lbar")
    a("s_barrier")
    a("s_add_u32 s17, s17, 1")
    a("s_cmp_lt_u32 s17, s50")
    a(f"s_cbranch_scc1 {P}_lloop")
    if c.stats:
        stats_final(a, c)
        a("s_barrier")
    a(f"s_branch {P}_ldone")
    if c.segA and PFW:
        a.lab(f"{P}_pfw")
        a("v_lshrrev_b32 v2, 3, v1")
        a("v_and_b32 v3, 7, v1")
        a("v_lshlrev_b32 v3, 4, v3")
        a("s_lshr_b32 s24, s48, 2")
        a(f"s_add_u32 s24, s24, s{sArow}")
        a("v_add_u32 v4, s24, v2")
        a("v_lshl_add_u32 v4, v4, 12, v3")
        for i in range(1, 4):
            a(f"v_add_u32 v{4+i}, {i*8*4096}, v4")
        a(f"s_lshr_b32 s24, s{sArow}, 7")
        a("s_and_b32 s24, s24, 7")
        a("s_lshl_b32 s24, s24, 4")
        a(f"s_add_u32 s24, s24, s{sBrow}")
        a("v_add_u32 v8, s24, v2")
        a(f"s_mov_b32 s25, {c.b_stride}")
        a("v_mul_lo_u32 v8, v8, s25")
        a("v_add_u32 v8, v8, v3")
        a(f"v_add_u32 v9, {8*c.b_stride}, v8")
        a(f"s_add_u32 s19, s19, {N}")
        def pf_stage(tag):
            a("s_cmp_ge_u32 s19, s54")
            a(f"s_cbranch_scc1 {P}_pfs{tag}")
            step_prep(a, c)
            for i in range(4):
                a(f"buffer_load_dwordx4 v[12:15], v{4+i}, s[4:7], s20 offen")
            for i in range(2):
                a(f"buffer_load_dwordx4 v[12:15], v{8+i}, s[8:11], s21 offen")
            a("s_waitcnt vmcnt(36)")
            a.lab(f"{P}_pfs{tag}")
        for k in range(c.PD):
            pf_stage(f"p{k}")
        a("s_barrier")
        a("s_barrier")
        a("s_sub_u32 s50, s18, 1")
        a.lab(f"{P}_pfloop")
        pf_stage("l")
        a("s_barrier")
        a("s_add_u32 s17, s17, 1")
        a("s_cmp_lt_u32 s17, s50")
        a(f"s_cbranch_scc1 {P}_pfloop")
        a("s_endpgm")

def role_setup(a):
    a("v_and_b32 v1, 63, v0")
    a("v_lshrrev_b32 v2, 6, v0")
    a("s_nop 0")
    a("v_readfirstlane_b32 s16, v2")
    a("s_lshr_b32 s53, s16, 2")
    a("s_and_b32 s16, s16, 3")

def store_phase(a, vT, cpr, nrows, lds_stride, g_stride, srdreg, soff, flags=""):
    nit = nrows * cpr // 512
    assert nit * 512 == nrows * cpr
    regs = []
    for i in range(nit):
        a(f"v_add_u32 v{vT}, {512*i}, v0")
        if cpr in (16, 32):
            sh = 4 if cpr == 16 else 5
            a(f"v_lshrrev_b32 v{vT+1}, {sh}, v{vT}")
            a(f"v_and_b32 v{vT+2}, {cpr-1}, v{vT}")
        else:
            assert cpr == 28
            a(f"v_mul_u32_u24 v{vT+1}, 2341, v{vT}")
            a(f"v_lshrrev_b32 v{vT+1}, 16, v{vT+1}")
            a(f"v_mul_u32_u24 v{vT+2}, 28, v{vT+1}")
            a(f"v_sub_u32 v{vT+2}, v{vT}, v{vT+2}")
        a(f"v_lshlrev_b32 v{vT+2}, 4, v{vT+2}")
        a(f"v_mul_u32_u24 v{vT+3}, {lds_stride}, v{vT+1}")
        a(f"v_add_u32 v{vT+3}, v{vT+3}, v{vT+2}")
        d = 8 + 4 * i
        a(f"ds_read_b128 v[{d}:{d+3}], v{vT+3}")
        a(f"s_mov_b32 s24, {g_stride}")
        a(f"v_mul_lo_u32 v{vT+1}, v{vT+1}, s24")
        a(f"v_add_u32 v{48+i}, v{vT+1}, v{vT+2}")
    for i in range(nit):
        d = 8 + 4 * i
        a(f"s_waitcnt lgkmcnt({nit-1-i})")
        a(f"buffer_store_dwordx4 v[{d}:{d+3}], v{48+i}, s[{srdreg}:{srdreg+3}], s{soff} offen" + flags)

def gen_k1(a, name):
    cd = GemmCfg("k1d", 128, 128, 4, btn=False, a_stride=1024, b_stride=1024, swap=False, stats=True)
    cm = GemmCfg("k1m", 128, 224, 3, btn=True, a_stride=1024, b_stride=3584, swap=True, stats=True)
    kernel_header(a, name)
    a("s_cmp_ge_u32 s2, 256")
    a("s_cbranch_scc1 L_k1_end")
    rt_start(a)
    stamp(a, 0)
    a(f"s_load_dwordx2 s[32:33], s[0:1], {KA_WS}")
    a(f"s_load_dwordx2 s[34:35], s[0:1], {KA_DR}")
    a(f"s_load_dwordx2 s[36:37], s[0:1], {KA_DI}")
    a(f"s_load_dwordx2 s[38:39], s[0:1], {KA_W1}")
    a(f"s_load_dwordx2 s[40:41], s[0:1], {KA_B1}")
    a(f"s_load_dwordx2 s[42:43], s[0:1], {KA_W2}")
    a(f"s_load_dwordx2 s[26:27], s[0:1], {KA_CR}")
    a(f"s_load_dwordx2 s[28:29], s[0:1], {KA_CI}")
    a(f"s_load_dwordx2 s[30:31], s[0:1], {KA_X}")
    role_setup(a)
    a("s_lshr_b32 s44, s2, 4")
    a("s_and_b32 s45, s2, 15")
    a("s_lshl_b32 s46, s44, 7")
    a("s_mov_b32 s17, 0")
    a("s_mov_b32 s18, 8")
    a("s_mov_b32 s19, 0")
    a("s_and_b32 s49, s44, 7" if not os.environ.get("NOROT1") else "s_mov_b32 s49, 0")
    a("s_mov_b32 s51, 8")
    a("s_waitcnt lgkmcnt(0)")
    srd(a, 4, 30, 31, 2048*512*2)
    a("s_cmp_ge_u32 s45, 8")
    a("s_cbranch_scc1 L_k1_mlp")
    c = cd; T = c.vTmp
    a("s_cmp_lt_u32 s45, 4")
    a("s_cselect_b64 s[24:25], s[34:35], s[36:37]")
    srd(a, 8, 24, 25, 512*512*2)
    a("s_and_b32 s47, s45, 3")
    a("s_lshl_b32 s47, s47, 7")
    gemm(a, c, 46, 47)
    a.lab("k1d_cdone")
    LS = 272
    a("s_cmp_lt_u32 s45, 4")
    a("s_mov_b32 s26, 1.0")
    a("s_cselect_b32 s26, s26, -1.0")
    a("s_lshr_b32 s27, s16, 1")
    a("s_and_b32 s28, s16, 1")
    a(f"s_mul_i32 s29, s28, {c.BN//c.WN*LS}")
    a(f"s_mul_i32 s30, s27, {c.BM//c.WM*2}")
    a("s_add_u32 s29, s29, s30")
    a("v_and_b32 v2, 15, v1")
    a("v_lshrrev_b32 v3, 4, v1")
    Mr = c.vFA; Rr = c.vFA + 16; Cs = c.vFB
    a(f"s_mul_i32 s30, s27, {c.BM//c.WM*4}")
    a(f"s_add_u32 s30, s30, {c.L_M}")
    a(f"v_lshlrev_b32 v{T}, 4, v3")
    a(f"v_add_u32 v{T}, s30, v{T}")
    for i in range(c.FM):
        a(f"ds_read_b128 v[{Mr+4*i}:{Mr+4*i+3}], v{T} offset:{i*64}")
        a(f"ds_read_b128 v[{Rr+4*i}:{Rr+4*i+3}], v{T} offset:{512 + i*64}")
    a(f"v_mul_u32_u24 v2, {LS}, v2")
    a("v_lshl_add_u32 v2, v3, 3, v2")
    a("v_add_u32 v2, s29, v2")
    a("s_waitcnt lgkmcnt(0)")
    for k in range(c.FM * 4):
        a(f"v_mul_f32 v{Rr+k}, s26, v{Rr+k}")
    for j in range(c.FN):
        for i in range(c.FM):
            d = c.vAcc + (i * c.FN + j) * 4
            for r in range(4):
                a(f"v_fma_f32 v{T+r}, -v{Mr+4*i+r}, v{c.vCS+4*j}, v{d+r}")
                a(f"v_mul_f32 v{T+r}, v{T+r}, v{Rr+4*i+r}")
            a(f"v_cvt_pk_bf16_f32 v{T+4+2*(i&1)}, v{T}, v{T+1}")
            a(f"v_cvt_pk_bf16_f32 v{T+5+2*(i&1)}, v{T+2}, v{T+3}")
            a(f"ds_write_b64 v2, v[{T+4+2*(i&1)}:{T+5+2*(i&1)}] offset:{j*16*LS + i*32}")
    a("s_waitcnt lgkmcnt(0)")
    a.lab("k1d_ldone")
    a("s_barrier")
    srd_off(a, 12, 32, 33, WS_BT, 512*BT_STRIDE)
    a("s_cmp_lt_u32 s45, 4")
    a("s_cselect_b32 s24, 0, 4096")
    a(f"s_mul_i32 s25, s47, {BT_STRIDE}")
    a("s_add_u32 s25, s25, s24")
    a("s_lshl_b32 s24, s46, 1")
    a("s_add_u32 s31, s25, s24")
    store_phase(a, 4, 16, 128, LS, BT_STRIDE, 12, 31, os.environ.get('K1F', ''))
    a("s_cmp_lg_u32 s53, 0")
    a("s_cbranch_scc1 L_k1_end")
    a("s_lshl_b32 s24, s44, 3")
    a("s_add_u32 s24, s24, s45")
    a("s_cmp_ge_u32 s24, 112")
    a("s_cbranch_scc1 L_k1_end")
    a("s_lshr_b32 s25, s24, 2")
    a("s_and_b32 s26, s24, 3")
    srd(a, 8, 42, 43, 1792*512*2)
    W2L = 65536
    a("s_lshl_b32 s27, s16, 8")
    a(f"s_mul_i32 s28, s25, {64*1024}")
    a("s_lshl_b32 s29, s26, 8")
    a("s_add_u32 s28, s28, s29")
    for i in range(4):
        a(f"v_add_u32 v{T}, s27, v1")
        if i:
            a(f"v_add_u32 v{T}, {i*64}, v{T}")
        a(f"v_lshrrev_b32 v{T+1}, 4, v{T}")
        a(f"v_and_b32 v{T+2}, 15, v{T}")
        a(f"v_and_b32 v{T+3}, 3, v{T+1}")
        a(f"v_lshrrev_b32 v{T+4}, 1, v{T+1}")
        a(f"v_and_b32 v{T+4}, 4, v{T+4}")
        a(f"v_or_b32 v{T+3}, v{T+3}, v{T+4}")
        a(f"v_lshlrev_b32 v{T+3}, 1, v{T+3}")
        a(f"v_xor_b32 v{T+2}, v{T+2}, v{T+3}")
        a(f"v_lshlrev_b32 v{T+2}, 4, v{T+2}")
        a(f"v_lshl_add_u32 v{T+8+i}, v{T+1}, 10, v{T+2}")
        if i:
            a(f"v_subrev_u32 v{T+8+i}, {i*1024}, v{T+8+i}")
    a("s_lshl_b32 s29, s16, 12")
    a(f"s_add_u32 m0, s29, {W2L}")
    a("s_nop 0")
    for i in range(4):
        a(f"buffer_load_dwordx4 v{T+8+i}, s[8:11], s28 offen" + (f" offset:{i*1024}" if i else "") + " lds")
    a("s_waitcnt vmcnt(0)")
    a("s_barrier")
    a("v_and_b32 v2, 15, v1")
    a("v_lshrrev_b32 v3, 4, v1")
    a(f"v_lshrrev_b32 v{T}, 2, v2")
    a(f"v_lshl_add_u32 v{T+1}, v3, 3, v{T}")
    a(f"v_lshlrev_b32 v{T+1}, 8, v{T+1}")
    a(f"v_and_b32 v{T+2}, 1, v3")
    a(f"v_lshl_or_b32 v{T+2}, v{T+2}, 2, v{T}")
    a(f"v_lshl_add_u32 v{T+1}, v{T+2}, 5, v{T+1}")
    a(f"v_and_b32 v{T+2}, 3, v2")
    a(f"v_lshl_add_u32 v{T+1}, v{T+2}, 3, v{T+1}")
    a("s_lshl_b32 s29, s16, 6")
    a(f"v_xor_b32 v{T+2}, s29, v{T+1}")
    a(f"v_xor_b32 v{T+3}, 32, v{T+2}")
    a(f"v_add_u32 v{T+2}, {W2L}, v{T+2}")
    a(f"v_add_u32 v{T+3}, {W2L}, v{T+3}")
    F = c.vFA
    for fi in range(2):
        for kk in range(2):
            d = F + (fi * 2 + kk) * 4
            a(f"ds_read_b64_tr_b16 v[{d}:{d+1}], v{T+2+fi} offset:{kk*32*256}")
            a(f"ds_read_b64_tr_b16 v[{d+2}:{d+3}], v{T+2+fi} offset:{kk*32*256 + 4*256}")
    a("s_lshl_b32 s29, s26, 7")
    a("s_lshl_b32 s30, s16, 5")
    a("s_add_u32 s29, s29, s30")
    a(f"v_add_u32 v{T}, s29, v2")
    a(f"s_mov_b32 s31, {BT_STRIDE}")
    a(f"v_mul_lo_u32 v{T}, v{T}, s31")
    a(f"v_lshl_add_u32 v{T}, v3, 4, v{T}")
    a("s_lshl_b32 s30, s25, 7")
    a(f"s_add_u32 s30, s30, {4096*2}")
    a(f"v_add_u32 v{T}, s30, v{T}")
    a(f"v_add_u32 v{T+1}, {16*BT_STRIDE}, v{T}")
    a("s_waitcnt lgkmcnt(0)")
    for fi in range(2):
        for kk in range(2):
            d = F + (fi * 2 + kk) * 4
            a(f"buffer_store_dwordx4 v[{d}:{d+3}], v{T+fi}, s[12:15], 0 offen offset:{kk*64}")
    a("s_branch L_k1_end")
    a.lab("L_k1_mlp")
    c = cm; T = c.vTmp
    srd(a, 8, 38, 39, 512*1792*2)
    a("s_sub_u32 s47, s45, 8")
    a("s_mul_i32 s47, s47, 224")
    stamp(a, 1)
    gemm(a, c, 46, 47)
    a.lab("k1m_cdone")
    stamp(a, 2)
    LS = 464
    srd(a, 8, 40, 41, 1792*2)
    a("s_lshr_b32 s27, s16, 1")
    a("s_and_b32 s28, s16, 1")
    a(f"s_mul_i32 s29, s28, {c.BN//c.WN*2}")
    a(f"s_mul_i32 s30, s27, {c.BM//c.WM*LS}")
    a("v_and_b32 v2, 15, v1")
    a("v_lshrrev_b32 v3, 4, v1")
    a("v_lshlrev_b32 v3, 3, v3")
    a("v_add_u32 v3, s29, v3")
    a(f"v_mul_u32_u24 v2, {LS}, v2")
    a("v_add3_u32 v2, v2, v3, s30")
    a("s_lshl_b32 s31, s47, 1")
    a("v_add_u32 v3, s31, v3")
    Bq = c.vFA
    Mr = c.vFA + 16; Rr = c.vFA + 20
    Bf = c.vFB
    Cs = c.vCS
    a(f"v_lshrrev_b32 v{T+1}, 4, v1")
    a(f"v_lshlrev_b32 v{T+1}, 4, v{T+1}")
    a(f"s_mul_i32 s30, s28, {c.BN//c.WN*4}")
    a(f"s_add_u32 s30, s30, {c.L_CS}")
    a(f"v_add_u32 v{T+1}, s30, v{T+1}")
    for j in range(c.FN):
        a(f"ds_read_b128 v[{Bf+4*j}:{Bf+4*j+3}], v{T+1} offset:{j*64}")
    a(f"v_and_b32 v{T}, 15, v1")
    a(f"s_mul_i32 s30, s27, {c.BM//c.WM*4}")
    a(f"s_add_u32 s30, s30, {c.L_M}")
    a(f"v_lshlrev_b32 v{T}, 2, v{T}")
    a(f"v_add_u32 v{T}, s30, v{T}")
    for i in range(c.FM):
        a(f"ds_read_b32 v{Mr+i}, v{T} offset:{i*64}")
        a(f"ds_read_b32 v{Rr+i}, v{T} offset:{512 + i*64}")
    a("s_waitcnt lgkmcnt(0)")
    for i in range(c.FM):
        for j in range(c.FN):
            d = c.vAcc + (i * c.FN + j) * 4
            o = T + 4 + 2 * (j & 1)
            for r in range(4):
                a(f"v_fma_f32 v{T+r}, -v{Mr+i}, v{Cs+4*j+r}, v{d+r}")
            for r in range(4):
                a(f"v_fma_f32 v{T+r}, v{T+r}, v{Rr+i}, v{Bf+4*j+r}")
            for r in range(4):
                a(f"v_max_f32 v{T+r}, 0, v{T+r}")
            for r in range(4):
                a(f"v_mul_f32 v{T+r}, v{T+r}, v{T+r}")
            a(f"v_cvt_pk_bf16_f32 v{o}, v{T}, v{T+1}")
            a(f"v_cvt_pk_bf16_f32 v{o+1}, v{T+2}, v{T+3}")
            a(f"ds_write_b64 v2, v[{o}:{o+1}] offset:{i*16*LS + j*32}")
    a("s_waitcnt lgkmcnt(0)")
    a.lab("k1m_ldone")
    a("s_barrier")
    stamp(a, 3)
    srd_off(a, 12, 32, 33, WS_H, 2048*4096)
    a("s_lshl_b32 s24, s46, 12")
    a("s_lshl_b32 s25, s47, 1")
    a("s_add_u32 s31, s24, s25")
    store_phase(a, 4, 28, 128, LS, 4096, 12, 31, os.environ.get('K1F', ''))
    stamp(a, 4)
    if STAMP:
        a("s_waitcnt vmcnt(0)")
    stamp(a, 5)
    stamp_flush(a, 6, 8)
    a.lab("L_k1_end")
    if os.environ.get("RT"):
        a("s_cmp_ge_u32 s2, 256")
        a("s_cbranch_scc1 L_k1_end2")
        rt_end(a, 0)
        a.lab("L_k1_end2")
    a("s_endpgm")
    nv = max(cd.nvgpr, cm.nvgpr)
    return kernel_desc(name, nv, 96), max(cd.lds(), cm.lds())

def gen_k2(a, name):
    c = GemmCfg("k2", 128, 128, 4, btn=False, a_stride=4096, b_stride=BT_STRIDE, swap=True, segA=True)
    T = c.vTmp
    kernel_header(a, name)
    a("s_cmp_ge_u32 s2, 256")
    a("s_cbranch_scc1 L_k2_end")
    rt_start(a)
    stamp(a, 0)
    a(f"s_load_dwordx2 s[26:27], s[0:1], {KA_CR}")
    a(f"s_load_dwordx2 s[28:29], s[0:1], {KA_CI}")
    a(f"s_load_dwordx2 s[32:33], s[0:1], {KA_WS}")
    a(f"s_load_dwordx2 s[34:35], s[0:1], {KA_DBG}")
    a(f"s_load_dwordx2 s[40:41], s[0:1], {KA_X}")
    a(f"s_load_dwordx2 s[42:43], s[0:1], {KA_B2}")
    a(f"s_load_dwordx2 s[56:57], s[0:1], {KA_OUT}")
    role_setup(a)
    a("s_and_b32 s44, s2, 7")
    a("s_lshr_b32 s45, s2, 3")
    a("s_lshr_b32 s46, s44, 1")
    a("s_and_b32 s47, s44, 1")
    a("s_lshl_b32 s47, s47, 3")
    a("s_lshr_b32 s48, s45, 2")
    a("s_add_u32 s47, s47, s48")
    a("s_and_b32 s48, s45, 3")
    a("s_lshl_b32 s47, s47, 7")
    a("s_lshl_b32 s48, s48, 7")
    if os.environ.get("FORCE_A0"):
        a("s_mov_b32 s47, 0")
    if os.environ.get("FORCE_B0"):
        a("s_mov_b32 s48, 0")
    if os.environ.get("FORCE_S0"):
        a("s_mov_b32 s46, 0")
    if ILV:
        a("s_mov_b32 s17, 0")
    else:
        a("s_mul_i32 s17, s46, 23")
    a("s_add_u32 s18, s17, 23")
    a("s_mov_b32 s19, s17")
    a("s_lshr_b32 s49, s45, 2")
    a(f"s_mul_i32 s49, s49, {ROT2}")
    a("s_and_b32 s50, s45, 3")
    a(f"s_mul_i32 s50, s50, {ROTN}")
    a("s_add_u32 s49, s49, s50")
    a("s_cmp_ge_u32 s49, 23")
    a("s_cselect_b32 s50, 23, 0")
    a("s_sub_u32 s49, s49, s50")
    a("s_mov_b32 s51, 23")
    a("s_waitcnt lgkmcnt(0)")
    a(f"s_add_u32 s30, s32, {WS_H}")
    a("s_addc_u32 s31, s33, 0")
    a("s_and_b32 s27, s27, 0xffff")
    a("s_and_b32 s29, s29, 0xffff")
    a("s_and_b32 s31, s31, 0xffff")
    srd(a, 4, 26, 27, 2048*4096)
    srd_off(a, 8, 32, 33, WS_BT, 512*BT_STRIDE)
    stamp(a, 1)
    gemm(a, c, 47, 48)
    a.lab("k2_cdone")
    stamp(a, 2)
    LS = 528
    a("s_lshr_b32 s27, s16, 1")
    a("s_and_b32 s28, s16, 1")
    a(f"s_mul_i32 s29, s28, {c.BN//c.WN*4}")
    a(f"s_mul_i32 s30, s27, {c.BM//c.WM*LS}")
    a("s_add_u32 s29, s29, s30")
    a("v_and_b32 v2, 15, v1")
    a("v_lshrrev_b32 v3, 4, v1")
    a(f"v_mul_u32_u24 v2, {LS}, v2")
    a("v_lshl_add_u32 v2, v3, 4, v2")
    a("v_add_u32 v2, s29, v2")
    for i in range(c.FM):
        for j in range(c.FN):
            d = c.vAcc + (i * c.FN + j) * 4
            a(f"ds_write_b128 v2, v[{d}:{d+3}] offset:{i*16*LS + j*64}")
    a("s_waitcnt lgkmcnt(0)")
    a.lab("k2_ldone")
    a("s_barrier")
    srd(a, 8, 34, 35, 256)
    a("s_lshr_b32 s24, s47, 5")
    a("s_lshr_b32 s25, s48, 7")
    a("s_add_u32 s24, s24, s25")
    a("s_lshl_b32 s36, s24, 2")
    srd_off(a, 12, 32, 33, WS_P, 4*2048*512*2)
    a("s_lshl_b32 s24, s47, 10")
    a("s_lshl_b32 s25, s48, 1")
    a("s_add_u32 s38, s24, s25")
    a("s_lshl_b32 s31, s46, 21")
    a("s_add_u32 s31, s31, s38")
    a("s_lshl_b32 s37, s46, 5")
    a("v_and_b32 v4, 15, v0")
    a("v_lshrrev_b32 v5, 4, v0")
    a("v_lshlrev_b32 v6, 5, v4")
    a("v_lshlrev_b32 v4, 4, v4")
    for i in range(3):
        a(f"v_add_u32 v7, {32*i}, v5")
        a("v_add_u32 v8, 32, v7")
        a("v_cmp_le_u32 vcc, s37, v7")
        a("s_nop 1")
        a("v_cndmask_b32 v7, v7, v8, vcc")
        a(f"v_mul_u32_u24 v8, {LS}, v7")
        a("v_add_u32 v8, v8, v6")
        a(f"ds_read_b128 v[{16+8*i}:{19+8*i}], v8")
        a(f"ds_read_b128 v[{20+8*i}:{23+8*i}], v8 offset:16")
        a(f"v_lshl_add_u32 v{48+i}, v7, 10, v4")
    srd(a, 4, 40, 41, 2048*512*2)
    srd(a, 16, 42, 43, 512*2)
    srd(a, 20, 56, 57, 2048*512*2)
    a("v_add_u32 v7, s37, v5")
    a(f"v_mul_u32_u24 v8, {LS}, v7")
    a("v_add_u32 v8, v8, v6")
    a("ds_read_b128 v[64:67], v8")
    a("ds_read_b128 v[68:71], v8 offset:16")
    a("v_lshl_add_u32 v52, v7, 10, v4")
    for i in range(3):
        a(f"s_waitcnt lgkmcnt({6-2*i})")
        b = 16 + 8 * i
        for e in range(4):
            a(f"v_cvt_pk_bf16_f32 v{b+e}, v{b+2*e}, v{b+2*e+1}")
        a(f"buffer_store_dwordx4 v[{b}:{b+3}], v{48+i}, s[12:15], s31 offen sc0 sc1")
    a("s_lshl_b32 s30, s48, 1")
    a("v_add_u32 v9, s30, v4")
    a("buffer_load_dwordx4 v[56:59], v9, s[16:19], 0 offen")
    a("buffer_load_dwordx4 v[60:63], v52, s[4:7], s38 offen")
    a("s_waitcnt vmcnt(2)")
    a("s_barrier")
    a("v_cmp_eq_u32 vcc, 0, v0")
    a("s_and_saveexec_b64 s[24:25], vcc")
    a("s_cbranch_execz k2_pl2")
    a("v_mov_b32 v10, 1")
    a("v_mov_b32 v11, s36")
    a("buffer_atomic_add v10, v11, s[8:11], 0 offen sc1")
    a.lab("k2_poll")
    a("buffer_load_dword v10, v11, s[8:11], 0 offen sc0 sc1")
    a("s_waitcnt vmcnt(0)")
    a("s_nop 0")
    a("v_readfirstlane_b32 s30, v10")
    a("s_cmp_ge_u32 s30, 4")
    a("s_cbranch_scc1 k2_pl2")
    a("s_sleep 1")
    a("s_branch k2_poll")
    a.lab("k2_pl2")
    a("s_mov_b64 exec, s[24:25]")
    a("s_barrier")
    for k in range(1, 4):
        a(f"s_add_u32 s24, s46, {k}")
        a("s_and_b32 s24, s24, 3")
        a("s_lshl_b32 s24, s24, 21")
        a("s_add_u32 s24, s24, s38")
        a(f"buffer_load_dwordx4 v[{68+4*k}:{71+4*k}], v52, s[12:15], s24 offen sc0 sc1")
    a("s_waitcnt vmcnt(3) lgkmcnt(0)")
    def addpk(src):
        for e in range(4):
            a(f"v_lshlrev_b32 v12, 16, v{src+e}")
            a(f"v_and_b32 v13, 0xffff0000, v{src+e}")
            a(f"v_add_f32 v{64+2*e}, v{64+2*e}, v12")
            a(f"v_add_f32 v{65+2*e}, v{65+2*e}, v13")
    addpk(56)
    addpk(60)
    a("s_waitcnt vmcnt(0)")
    for k in range(1, 4):
        addpk(68 + 4 * k)
    for e in range(4):
        a(f"v_cvt_pk_bf16_f32 v{16+e}, v{64+2*e}, v{65+2*e}")
    a("buffer_store_dwordx4 v[16:19], v52, s[20:23], s38 offen")
    a.lab("L_k2_end")
    if os.environ.get("RT"):
        a("s_cmp_ge_u32 s2, 256")
        a("s_cbranch_scc1 L_k2_end2")
        rt_end(a, 1)
        a.lab("L_k2_end2")
    a("s_endpgm")
    return kernel_desc(name, c.nvgpr, 96), c.lds()

def gen_k3(a, name):
    kernel_header(a, name)
    a("s_cmp_ge_u32 s2, 512")
    a("s_cbranch_scc1 L_k3_end")
    a(f"s_load_dwordx2 s[4:5], s[0:1], {KA_X}")
    a(f"s_load_dwordx2 s[6:7], s[0:1], {KA_B2}")
    a(f"s_load_dwordx2 s[24:25], s[0:1], {KA_OUT}")
    a(f"s_load_dwordx2 s[26:27], s[0:1], {KA_WS}")
    a("s_lshl_b32 s3, s2, 8")
    a("v_add_u32 v1, s3, v0")
    a("v_lshlrev_b32 v2, 4, v1")
    a("v_lshlrev_b32 v3, 5, v1")
    a("v_and_b32 v4, 63, v1")
    a("v_lshlrev_b32 v4, 4, v4")
    a("s_waitcnt lgkmcnt(0)")
    srd(a, 8, 4, 5, 2048*512*2)
    srd(a, 12, 6, 7, 512*2)
    srd(a, 16, 24, 25, 2048*512*2)
    srd_off(a, 20, 26, 27, WS_P, NSPLIT*2048*512*4)
    a("buffer_load_dwordx4 v[8:11], v2, s[8:11], 0 offen")
    a("buffer_load_dwordx4 v[12:15], v4, s[12:15], 0 offen")
    for s in range(NSPLIT):
        a(f"s_mov_b32 s28, {s << 22}")
        a(f"buffer_load_dwordx4 v[{16+8*s}:{19+8*s}], v3, s[20:23], s28 offen")
        a(f"buffer_load_dwordx4 v[{20+8*s}:{23+8*s}], v3, s[20:23], s28 offen offset:16")
    a("s_waitcnt vmcnt(0)")
    for s in range(1, NSPLIT):
        for e in range(8):
            a(f"v_add_f32 v{16+e}, v{16+e}, v{16+8*s+e}")
    for i in range(4):
        a(f"v_lshlrev_b32 v5, 16, v{8+i}")
        a(f"v_and_b32 v6, 0xffff0000, v{8+i}")
        a(f"v_add_f32 v{16+2*i}, v{16+2*i}, v5")
        a(f"v_add_f32 v{17+2*i}, v{17+2*i}, v6")
        a(f"v_lshlrev_b32 v5, 16, v{12+i}")
        a(f"v_and_b32 v6, 0xffff0000, v{12+i}")
        a(f"v_add_f32 v{16+2*i}, v{16+2*i}, v5")
        a(f"v_add_f32 v{17+2*i}, v{17+2*i}, v6")
    for i in range(4):
        a(f"v_cvt_pk_bf16_f32 v{8+i}, v{16+2*i}, v{17+2*i}")
    a("buffer_store_dwordx4 v[8:11], v2, s[16:19], 0 offen")
    a.lab("L_k3_end")
    a("s_endpgm")
    return kernel_desc(name, 16 + 8 * NSPLIT, 32)

def main():
    hdr = open("cdna_kernels/" + KN + ".s.ref").read().split("; Override launch geometry")[0]
    descs = []
    body = Asm()
    body.raw('.amdgcn_target "amdgcn-amd-amdhsa--gfx950"')
    body.raw(".text")
    d, lds1 = gen_k1(body, "gemm1_kernel"); descs.append(d)
    d, lds2 = gen_k2(body, "gemm2_kernel"); descs.append(d)
    out = hdr
    out += f"; @launch kernel=gemm1_kernel grid=(256,1,1) block=(512,1,1) lds={lds1}\n"
    out += f"; @launch kernel=gemm2_kernel grid=(256,1,1) block=({576 if PFW else 512},1,1) lds={lds2}\n"
    out += body.text()
    out += '.section .rodata,"a"\n' + "".join(descs)
    dst = sys.argv[1] if len(sys.argv) > 1 else "cdna_kernels/" + KN + ".s"
    open(dst, "w").write(out)

main()
```
